```python
import torch

def _softmax(x, axis=-1):
    return torch.softmax(x, dim=axis)
def _gelu(x):
    return torch.nn.functional.gelu(x, approximate="tanh")
def _silu(x):
    return torch.nn.functional.silu(x)
def _sigmoid(x):
    return torch.sigmoid(x)
def _layernorm(x, axis=-1, eps=1e-5):
    m = x.mean(dim=axis, keepdim=True)
    v = x.var(dim=axis, keepdim=True, unbiased=False)
    return (x - m) / torch.sqrt(v + eps)
def _scatter_add(tgt, idx, src, axis=0):
    return tgt.clone().index_add_(axis, idx, src)
def _segment_sum(src, seg, n):
    out = torch.zeros((n,) + src.shape[1:], dtype=src.dtype)
    return out.index_add_(0, seg, src)
def _pad(x, pw):
    flat = tuple(v for pair in reversed(pw) for v in pair)
    return torch.nn.functional.pad(x, flat)

kernel_name = 'gated_mix__grouped_kv_mqa__glu_gated_glu__prompt'

def setup_inputs():

    _w = (lambda a: (lambda t: t.to(torch.bfloat16) if t.is_floating_point() else t)(torch.as_tensor(a)))
    def _A_setup():
        B, S, D, H = 1, 2048, 512, 32
        Dh = D // H
        return {
            "x": _w((lambda *s: torch.randn(*s, dtype=torch.bfloat16) * 0.05)(B, S, D)),
            "wq": _w((lambda *s: torch.randn(*s, dtype=torch.bfloat16) * 0.8)(D, H * Dh)),
            "wk": _w((lambda *s: torch.randn(*s, dtype=torch.bfloat16) * 0.8)(D, Dh)),
            "wv": _w((lambda *s: torch.randn(*s, dtype=torch.bfloat16) * 0.2)(D, Dh)),
            "wo": _w((lambda *s: torch.randn(*s, dtype=torch.bfloat16) * 0.2)(H * Dh, D)),
        }
    _A_in = _A_setup()

    def _B_setup():
        B, S, D, F = 1, 2048, 512, 1792
        return {
            "x": _w((lambda *s: torch.randn(*s, dtype=torch.bfloat16) * 0.05)(B, S, D)),
            "w_gate": _w((lambda *s: torch.randn(*s, dtype=torch.bfloat16) * 0.4)(D, F)),
            "w_up": _w((lambda *s: torch.randn(*s, dtype=torch.bfloat16) * 0.05)(D, F)),
            "w_down": _w((lambda *s: torch.randn(*s, dtype=torch.bfloat16) * 0.05)(F, D)),
        }
    _B_in = _B_setup()

    return {
        "A_x": _A_in["x"],
        "A_wq": _A_in["wq"],
        "A_wk": _A_in["wk"],
        "A_wv": _A_in["wv"],
        "A_wo": _A_in["wo"],
        "B_x": _B_in["x"],
        "B_w_gate": _B_in["w_gate"],
        "B_w_up": _B_in["w_up"],
        "B_w_down": _B_in["w_down"],
        "gate_w": _w((lambda *s: torch.randn(*s, dtype=torch.bfloat16) * 0.05)(512) * 16.0),
    }

def reference(A_x, A_wq, A_wk, A_wv, A_wo, B_x, B_w_gate, B_w_up, B_w_down, gate_w):
    def _A_ref(x, wq, wk, wv, wo):
        B, S, D = x.shape
        H = 32
        Dh = D // H
        q = (lambda x, *d: x.permute(*d))((x @ wq).reshape(B, S, H, Dh), 0, 2, 1, 3)
        k = x @ wk
        v = x @ wv
        scores = torch.einsum("bhqd,bkd->bhqk", q, k) * (Dh ** -0.5)
        p = _softmax(scores, axis=-1)
        o = torch.einsum("bhqk,bkd->bhqd", p, v)
        return (lambda x, *d: x.permute(*d))(o, 0, 2, 1, 3).reshape(B, S, H * Dh) @ wo

    def _B_ref(x, w_gate, w_up, w_down):
        g = torch.einsum("bsd,df->bsf", x, w_gate)
        u = torch.einsum("bsd,df->bsf", x, w_up)
        h = _sigmoid(g) * u
        return torch.einsum("bsf,fd->bsd", h, w_down)

    x = A_x
    g = _sigmoid((x * gate_w).sum(-1, keepdims=True))
    a = _A_ref(x, A_wq, A_wk, A_wv, A_wo)
    b = _B_ref(x, B_w_gate, B_w_up, B_w_down)
    return g * a + (1 - g) * b
```

```python
class Asm:
    def __init__(self):
        self.lines = []
        self.vm = []
    def __call__(self, s):
        for l in s.split("\n"):
            l = l.strip()
            if l: self.lines.append("    " + l)
    def label(self, l): self.lines.append(l + ":")
    def comment(self, c): self.lines.append("    ; " + c)
    def raw(self, s): self.lines.append(s)
    def vmem(self, s, tag):
        self(s); self.vm.append(tag)
    def vm_n(self, tag):
        idx = max(i for i, t in enumerate(self.vm) if t == tag)
        return len(self.vm) - 1 - idx
    def wait_vm(self, tag, extra=""):
        n = self.vm_n(tag)
        assert n <= 63, n
        self(f"s_waitcnt vmcnt({n}){extra}")
        self.vm = self.vm[len(self.vm) - n:] if n else []
    def text(self): return "\n".join(self.lines) + "\n"

def vr(a, n=1):
    return f"v{a}" if n == 1 else f"v[{a}:{a+n-1}]"
def sr(a, n=1):
    return f"s{a}" if n == 1 else f"s[{a}:{a+n-1}]"

def srd(a, d, ptr, nbytes):
    a(f"s_mov_b32 s{d}, s{ptr}")
    a(f"s_and_b32 s{d+1}, s{ptr+1}, 0xffff")
    a(f"s_mov_b32 s{d+2}, {nbytes}")
    a(f"s_mov_b32 s{d+3}, 0x00020000")

def kernel_head(a, name):
    a.raw(".text")
    a.raw(f".globl {name}")
    a.raw(".p2align 8")
    a.raw(f".type {name},@function")
    a.label(name)

def kernel_desc(a, name, vgpr, sgpr=102, accum=None):
    if accum is None: accum = (vgpr + 3) // 4 * 4
    a.raw('.section .rodata,"a"')
    a.raw(".p2align 6")
    a.raw(f".amdhsa_kernel {name}")
    a.raw(f"  .amdhsa_next_free_vgpr {vgpr}")
    a.raw(f"  .amdhsa_next_free_sgpr {sgpr}")
    a.raw(f"  .amdhsa_accum_offset {accum}")
    a.raw("  .amdhsa_group_segment_fixed_size 0")
    a.raw("  .amdhsa_kernarg_size 104")
    a.raw("  .amdhsa_user_sgpr_count 2")
    a.raw("  .amdhsa_user_sgpr_kernarg_segment_ptr 1")
    a.raw("  .amdhsa_system_sgpr_workgroup_id_x 1")
    a.raw(".end_amdhsa_kernel")
```

```python
import sys, struct, math
from asmlib import *

def f32hex(x): return "0x%08x" % struct.unpack("<I", struct.pack("<f", x))[0]
LOG2E = 1.4426950408889634
WS_HO = 0
WS_Q  = 0xA00000
WS_KV = 0xC00000
WS_G  = 0xC20000
WS_SZ = 0xC22000

def k1(a):
    name = "proj_kernel"
    kernel_head(a, name)
    XB, WB, KVB = 0, 49152, 49152 + 3 * 32768
    KVS = 4352
    a("s_cmp_ge_u32 s2, 256")
    a("s_cbranch_scc1 L1_end")
    a("s_load_dwordx4 s[36:39], s[0:1], 0")
    a("s_load_dwordx4 s[40:43], s[0:1], 16")
    a("s_load_dwordx4 s[44:47], s[0:1], 48")
    a("s_load_dwordx2 s[48:49], s[0:1], 72")
    a("s_load_dwordx2 s[50:51], s[0:1], 96")
    a("v_lshrrev_b32 v1, 6, v0")
    a("v_and_b32 v0, 63, v0")
    a("s_and_b32 s3, s2, 7")
    a("v_readfirstlane_b32 s32, v1")
    a("s_lshr_b32 s33, s2, 3")
    a("s_and_b32 s34, s3, 1")
    a("s_lshl_b32 s34, s34, 3")
    a("s_and_b32 s35, s33, 7")
    a("s_add_u32 s34, s34, s35")
    a("s_lshr_b32 s35, s3, 1")
    a("s_lshl_b32 s35, s35, 2")
    a("s_lshr_b32 s33, s33, 3")
    a("s_add_u32 s35, s35, s33")
    a("s_waitcnt lgkmcnt(0)")
    srd(a, 4, 36, 2097152)
    srd(a, 24, 50, WS_SZ)
    srd(a, 28, 48, 1024)
    a("s_lshl_b32 s52, s34, 7")
    a("s_lshl_b32 s53, s35, 3")
    a("s_add_u32 s52, s52, s53")
    a("s_add_u32 s52, s52, s32")
    a("s_lshl_b32 s53, s52, 10")
    a("v_lshlrev_b32 v2, 4, v0")
    a.vmem("buffer_load_dwordx4 v[8:11], v2, s[4:7], s53 offen", "g")
    a.vmem("buffer_load_dwordx4 v[12:15], v2, s[28:31], 0 offen", "g")
    a("s_mov_b32 s10, 524288")
    a("s_mov_b32 s54, 1024")
    a("s_cmp_ge_u32 s35, 14")
    a("s_cselect_b32 s8, s38, s44")
    a("s_cselect_b32 s9, s39, s45")
    a("s_cselect_b32 s12, s38, s46")
    a("s_cselect_b32 s13, s39, s47")
    a("s_cselect_b32 s10, s10, 1835008")
    a("s_cselect_b32 s54, s54, 3584")
    a("s_and_b32 s9, s9, 0xffff")
    a("s_and_b32 s13, s13, 0xffff")
    a("s_mov_b32 s14, s10")
    a("s_mov_b32 s11, 0x00020000")
    a("s_mov_b32 s15, 0x00020000")
    a("s_lshl_b32 s55, s35, 8")
    a("s_sub_u32 s57, s35, 14")
    a("s_lshl_b32 s57, s57, 9")
    a("s_add_u32 s58, s57, 256")
    a("s_cmp_ge_u32 s35, 14")
    a("s_cselect_b32 s56, s58, s55")
    a("s_cselect_b32 s55, s57, s55")
    a("s_and_b32 s57, s32, 2")
    a("s_cmp_lg_u32 s57, 0")
    a("s_cselect_b32 s16, s42, s40")
    a("s_cselect_b32 s17, s43, s41")
    a("s_and_b32 s17, s17, 0xffff")
    a("s_mov_b32 s18, 16384")
    a("s_mov_b32 s19, 0x00020000")
    a("v_lshrrev_b32 v4, 4, v0")
    a("s_and_b32 s57, s32, 1")
    a("s_lshl_b32 s57, s57, 2")
    a("v_add_u32 v5, s57, v4")
    a("v_and_b32 v6, 7, v0")
    a("v_xor_b32 v5, v5, v6")
    a("v_lshlrev_b32 v5, 4, v5")
    a("v_lshrrev_b32 v6, 3, v0")
    a("v_lshl_add_u32 v3, v6, 10, v5")
    a("s_lshl_b32 s59, s34, 17")
    a("s_lshl_b32 s57, s32, 13")
    a("s_add_u32 s59, s59, s57")
    a("v_and_b32 v5, 15, v0")
    a("v_lshrrev_b32 v5, 1, v5")
    a("v_lshlrev_b32 v6, 1, v4")
    a("v_xor_b32 v5, v5, v6")
    a("v_lshlrev_b32 v5, 5, v5")
    a("v_and_b32 v6, 1, v0")
    a("v_lshl_add_u32 v5, v6, 4, v5")
    a("s_lshl_b32 s57, s32, 2")
    a("v_add_u32 v6, s57, v4")
    a("v_mul_u32_u24 v6, s54, v6")
    a("v_add_u32 v16, v5, v6")
    a("v_xor_b32 v5, 32, v5")
    a("v_add_u32 v17, v5, v6")
    a("v_add_u32 v16, s55, v16")
    a("v_add_u32 v17, s56, v17")
    a("s_and_b32 s57, s32, 1")
    a("s_lshl_b32 s57, s57, 10")
    a("v_add_u32 v18, s57, v2")
    a("s_lshl_b32 s60, s32, 10")
    a("s_and_b32 s58, s32, 2")
    a("s_mul_i32 s58, s58, 1088")
    a("s_add_u32 s61, s57, s58")
    a(f"s_add_u32 s61, s61, {KVB}")
    a("s_lshl_b32 s62, s54, 5")
    a("s_lshl_b32 s63, s54, 6")
    a("s_mov_b32 s64, 0")

    def dma_chunk(c, isq):
        st = c % 3
        for n in range(2):
            a(f"s_add_u32 m0, s60, {XB + st*16384 + n*8192}")
            a(f"s_add_u32 s65, s59, {c*128 + n*65536}")
            a.vmem("buffer_load_dwordx4 v3, s[4:7], s65 offen lds", f"c{c}")
        a("s_add_u32 s66, s64, s62")
        for half in range(2):
            for n in range(2):
                a(f"s_add_u32 m0, s60, {WB + st*32768 + half*16384 + n*8192}")
                a("s_nop 0")
                a.vmem(f"buffer_load_dwordx4 v{16+half}, s[{8+4*half}:{11+4*half}], s{64 if n==0 else 66} offen lds", f"c{c}")
        a("s_add_u32 s64, s64, s63")
        if isq:
            a(f"s_add_u32 m0, s61, {st*KVS}")
            a(f"s_mov_b32 s65, {c*2048}")
            a.vmem("buffer_load_dwordx4 v18, s[16:19], s65 offen lds", f"c{c}")

    a("v_and_b32 v5, 31, v0")
    a("v_lshrrev_b32 v6, 1, v5")
    a("v_and_b32 v6, 7, v6")
    a("v_lshrrev_b32 v7, 5, v0")
    a("v_xor_b32 v6, v6, v7")
    a("v_lshlrev_b32 v6, 4, v6")
    a("v_lshl_add_u32 v20, v5, 7, v6")
    a("s_lshr_b32 s67, s32, 2")
    a("s_and_b32 s68, s32, 3")
    a("s_lshl_b32 s57, s67, 13")
    a("v_add_u32 v20, s57, v20")
    a("v_xor_b32 v21, 32, v20")
    a("v_xor_b32 v22, 64, v20")
    a("v_xor_b32 v23, 0x60, v20")
    a("v_and_b32 v5, 1, v4")
    a("v_bfe_u32 v6, v0, 2, 2")
    a("v_lshl_add_u32 v19, v7, 3, v6")
    a("v_lshl_add_u32 v6, v6, 1, v5")
    a("s_lshl_b32 s57, s68, 1")
    a("v_xor_b32 v6, s57, v6")
    a("v_lshlrev_b32 v6, 5, v6")
    a("v_lshl_add_u32 v6, v19, 8, v6")
    a("v_lshl_add_u32 v6, v5, 14, v6")
    a("v_and_b32 v7, 3, v0")
    a("v_lshl_add_u32 v6, v7, 3, v6")
    for st in range(3):
        a(f"v_add_u32 v{24+2*st}, {WB + st*32768}, v6")
        a(f"v_xor_b32 v{25+2*st}, 32, v{24+2*st}")
    a("v_mul_u32_u24 v5, 2176, v5")
    a("v_lshl_add_u32 v5, v19, 5, v5")
    a("v_lshl_add_u32 v5, v7, 3, v5")
    a(f"v_add_u32 v30, {KVB}, v5")

    ACC = 64
    FR = 32
    KFR = 144
    for i in range(80):
        a(f"v_mov_b32 v{ACC+i}, 0")

    a("s_cmp_ge_u32 s35, 14")
    a("s_cbranch_scc1 L1_q")
    vm0 = list(a.vm)
    for isq in (False, True):
        a.vm = list(vm0)
        if isq: a.label("L1_q")
        for c in range(3): dma_chunk(c, isq)
        a.wait_vm("g")
        a("v_mov_b32 v31, 0")
        for i in range(4):
            a(f"v_dot2c_f32_bf16 v31, v{8+i}, v{12+i}")
        a("s_nop 2")
        for sh in (1, 2, 4, 8):
            a(f"v_add_f32_dpp v31, v31, v31 row_shr:{sh} row_mask:0xf bank_mask:0xf bound_ctrl:0")
            a("s_nop 1")
        a("v_add_f32_dpp v31, v31, v31 row_bcast:15 row_mask:0xa bank_mask:0xf")
        a("s_nop 1")
        a("v_add_f32_dpp v31, v31, v31 row_bcast:31 row_mask:0xc bank_mask:0xf")
        a("s_nop 1")
        a("v_readlane_b32 s57, v31, 63")
        a("s_nop 1")
        a(f"v_mov_b32 v31, {f32hex(-LOG2E)}")
        a("v_mul_f32 v31, s57, v31")
        a("v_exp_f32 v31, v31")
        a("s_nop 0")
        a("v_add_f32 v31, 1.0, v31")
        a("v_rcp_f32 v31, v31")
        a("s_lshl_b32 s57, s52, 2")
        a(f"s_add_u32 s57, s57, {WS_G}")
        a("v_mov_b32 v8, 0")
        a.vmem("buffer_store_dword v31, v8, s[24:27], s57 offen", "gs")

        def reads(c, ks, buf):
            st = c % 3
            b = FR + 16 * buf
            a(f"ds_read_b128 {vr(b,4)}, v{20+ks} offset:{XB + st*16384}")
            a(f"ds_read_b64_tr_b16 {vr(b+8,2)}, v{24+2*st} offset:{ks*4096}")
            a(f"ds_read_b64_tr_b16 {vr(b+10,2)}, v{24+2*st} offset:{ks*4096+1024}")
            a(f"ds_read_b128 {vr(b+4,4)}, v{20+ks} offset:{XB + st*16384 + 4096}")
            a(f"ds_read_b64_tr_b16 {vr(b+12,2)}, v{25+2*st} offset:{ks*4096}")
            a(f"ds_read_b64_tr_b16 {vr(b+14,2)}, v{25+2*st} offset:{ks*4096+1024}")
            if isq:
                a(f"ds_read_b64_tr_b16 {vr(KFR+4*buf,2)}, v30 offset:{st*KVS + ks*512}")
                a(f"ds_read_b64_tr_b16 {vr(KFR+4*buf+2,2)}, v30 offset:{st*KVS + ks*512 + 128}")
        def mfmas(buf):
            b = FR + 16 * buf
            for i in range(2):
                for j in range(2):
                    d = ACC + (i*2+j)*16
                    a(f"v_mfma_f32_32x32x16_bf16 {vr(d,16)}, {vr(b+8+4*j,4)}, {vr(b+4*i,4)}, {vr(d,16)}")
            if isq:
                pass
        a.wait_vm("c0")
        a("s_barrier")
        reads(0, 0, 0)
        buf = 0
        for c in range(8):
            for ks in range(4):
                if ks < 3:
                    reads(c, ks+1, buf ^ 1)
                    nrd = 8 if isq else 6
                    a(f"s_waitcnt lgkmcnt({nrd})")
                else:
                    if c < 7:
                        a.wait_vm(f"c{c+1}", " lgkmcnt(0)")
                        a("s_barrier")
                        reads(c+1, 0, buf ^ 1)
                        if c + 3 < 8: dma_chunk(c+3, isq)
                    else:
                        a("s_waitcnt lgkmcnt(0)")
                mfmas(buf)
                if isq:
                    b = FR + 16*buf
                    d = ACC + 64
                    a("s_bitcmp1_b32 s68, 0")
                    a(f"s_cbranch_scc1 L1_kv{c}_{ks}")
                    a(f"v_mfma_f32_32x32x16_bf16 {vr(d,16)}, {vr(KFR+4*buf,4)}, {vr(b,4)}, {vr(d,16)}")
                    a(f"s_branch L1_kve{c}_{ks}")
                    a.label(f"L1_kv{c}_{ks}")
                    a(f"v_mfma_f32_32x32x16_bf16 {vr(d,16)}, {vr(KFR+4*buf,4)}, {vr(b+4,4)}, {vr(d,16)}")
                    a.label(f"L1_kve{c}_{ks}")
                buf ^= 1
        a("s_nop 15")
        a("s_lshl_b32 s70, s34, 2")
        a("s_lshl_b32 s57, s67, 1")
        a("s_add_u32 s70, s70, s57")
        if not isq:
            a("s_mul_i32 s71, s70, 144")
            a("s_lshl_b32 s57, s35, 3")
            a("s_add_u32 s71, s71, s57")
            a("s_lshl_b32 s57, s68, 1")
            a("s_add_u32 s71, s71, s57")
            a("s_lshl_b32 s71, s71, 10")
            a(f"s_add_u32 s72, s71, {144*1024}")
            a(f"s_mov_b32 s57, {f32hex(-LOG2E)}")
            for i in range(2):
                for j in range(2):
                    d = ACC + (i*2+j)*16
                    for r in range(8): a(f"v_mul_f32 v{d+r}, s57, v{d+r}")
                    for r in range(8): a(f"v_exp_f32 v{d+r}, v{d+r}")
                    for r in range(8): a(f"v_add_f32 v{d+r}, 1.0, v{d+r}")
                    for r in range(8): a(f"v_rcp_f32 v{d+r}, v{d+r}")
                    for r in range(8): a(f"v_mul_f32 v{d+r}, v{d+r}, v{d+8+r}")
                    for r in range(4): a(f"v_cvt_pk_bf16_f32 v{d+8+r}, v{d+2*r}, v{d+2*r+1}")
                    a(f"buffer_store_dwordx4 {vr(d+8,4)}, v2, s[24:27], s{71+i} offen offset:{j*1024}")
            a("s_endpgm")
        else:
            a("s_lshl_b32 s71, s70, 5")
            a("s_sub_u32 s57, s35, 14")
            a("s_lshl_b32 s57, s57, 4")
            a("s_add_u32 s71, s71, s57")
            a("s_lshl_b32 s57, s68, 1")
            a("s_add_u32 s71, s71, s57")
            a("s_lshl_b32 s71, s71, 10")
            a(f"s_add_u32 s71, s71, {WS_Q}")
            a(f"s_add_u32 s72, s71, {32*1024}")
            a(f"s_add_u32 s73, s71, {8*1024}")
            a(f"s_add_u32 s74, s72, {8*1024}")
            a(f"s_mov_b32 s57, {f32hex(0.25*LOG2E)}")
            for i in range(2):
                for j in range(2):
                    d = ACC + (i*2+j)*16
                    for r in range(16): a(f"v_mul_f32 v{d+r}, s57, v{d+r}")
                    for r in range(8): a(f"v_cvt_pk_bf16_f32 v{32+ (i*2+j)*8 + r}, v{d+2*r}, v{d+2*r+1}")
                    o = 32 + (i*2+j)*8
                    a(f"buffer_store_dwordx4 {vr(o,4)}, v2, s[24:27], s{71+i} offen offset:{j*1024}")
                    a(f"buffer_store_dwordx4 {vr(o+4,4)}, v2, s[24:27], s{73+i} offen offset:{j*1024}")
            a("s_cmp_lg_u32 s35, 14")
            a("s_cbranch_scc1 L1_end")
            a("s_cmp_ge_u32 s68, 2")
            a("s_cbranch_scc1 L1_end")
            d = ACC + 64
            a("s_add_u32 s70, s70, s68")
            a("s_lshl_b32 s71, s70, 11")
            a(f"s_add_u32 s71, s71, {WS_KV}")
            for r in range(8): a(f"v_cvt_pk_bf16_f32 v{8+r}, v{d+2*r}, v{d+2*r+1}")
            a("buffer_store_dwordx4 v[8:11], v2, s[24:27], s71 offen")
            a("v_bfe_u32 v5, v0, 3, 2")
            a("v_lshlrev_b32 v5, 8, v5")
            a("v_and_b32 v6, 7, v0")
            a("v_lshl_add_u32 v5, v6, 1, v5")
            a("v_lshrrev_b32 v6, 5, v0")
            a("v_lshl_add_u32 v5, v6, 6, v5")
            for r in range(8):
                off = 1024 + ((r//4)*8 + r%4)*16
                op = "buffer_store_short" if r % 2 == 0 else "buffer_store_short_d16_hi"
                a(f"{op} v{12 + r//2}, v5, s[24:27], s71 offen offset:{off}")
    a.label("L1_end")
    a("s_endpgm")
    return name, 152, KVB + 3*KVS

def k2(a):
    name = "attn_kernel"
    kernel_head(a, name)
    a.vm = []
    a("s_cmp_ge_u32 s2, 256")
    a("s_cbranch_scc1 L2_end")
    a("s_load_dwordx2 s[50:51], s[0:1], 96")
    a("v_lshrrev_b32 v1, 6, v0")
    a("v_and_b32 v0, 63, v0")
    a("s_nop 0")
    a("v_readfirstlane_b32 s32, v1")
    a("v_lshlrev_b32 v2, 4, v0")
    a("s_waitcnt lgkmcnt(0)")
    srd(a, 24, 50, WS_SZ)
    a("s_lshl_b32 s33, s2, 3")
    a("s_add_u32 s33, s33, s32")
    a("s_lshl_b32 s34, s33, 10")
    a(f"s_add_u32 s34, s34, {WS_Q}")
    a.vmem("buffer_load_dwordx4 v[4:7], v2, s[24:27], s34 offen", "q")
    a("s_lshr_b32 s35, s33, 5")
    a("s_and_b32 s36, s33, 31")
    a("v_and_b32 v3, 31, v0")
    a("v_lshlrev_b32 v3, 2, v3")
    a("s_lshl_b32 s37, s35, 7")
    a(f"s_add_u32 s37, s37, {WS_G}")
    a.vmem("buffer_load_dword v8, v3, s[24:27], s37 offen", "q")
    a("s_lshl_b32 s60, s32, 10")
    a(f"s_add_u32 s61, s60, {WS_KV}")
    for n in range(16):
        a(f"s_add_u32 m0, s60, {n*8192}")
        a(f"s_add_u32 s62, s61, {n*8192}")
        a.vmem("buffer_load_dwordx4 v2, s[24:27], s62 offen lds", "kv")
    X, Y, O = 16, 32, 48
    KF, VF = 64, 72
    NM = 88
    a("v_mov_b32 v9, 0xdddd")
    for i in range(16): a(f"v_mov_b32 v{O+i}, 0")
    for i in range(16): a(f"v_mov_b32 v{VF+i}, 0x3f803f80")
    a("v_mov_b32 v10, v2")
    a("v_and_b32 v11, 15, v0")
    a("v_lshlrev_b32 v11, 4, v11")
    a("v_lshrrev_b32 v12, 5, v0")
    a("v_lshl_add_u32 v11, v12, 8, v11")
    a("v_add_u32 v11, 1024, v11")
    a("s_mov_b32 s40, 0xffff")
    a("s_mov_b32 s41, 0xffff")
    a.wait_vm("kv")
    a("s_barrier")
    U = 4
    def rdK(t, base=0): a(f"ds_read_b128 {vr(KF+4*(t%2),4)}, v10 offset:{t*2048}")
    def rdV(t):
        a("s_mov_b64 exec, s[40:41]")
        a(f"ds_read_b128 {vr(VF+8*(t%2),4)}, v11 offset:{t*2048}")
        a(f"ds_read_b128 {vr(VF+8*(t%2)+4,4)}, v11 offset:{t*2048+512}")
        a("s_mov_b64 exec, -1")
    def mainloop(lbl, cop):
        rdK(0); rdK(1); rdV(0)
        a("s_waitcnt lgkmcnt(0)")
        a(f"v_mfma_f32_32x32x16_bf16 {vr(X,16)}, {vr(KF,4)}, v[4:7], {cop}")
        a("s_nop 7")
        a(f"s_mov_b32 s42, {64//U}")
        a.label(lbl)
        for t in range(U):
            cur, nxt = (X, Y) if t % 2 == 0 else (Y, X)
            a("s_waitcnt lgkmcnt(0)")
            a(f"v_mfma_f32_32x32x16_bf16 {vr(nxt,16)}, {vr(KF+4*((t+1)%2),4)}, v[4:7], {cop}")
            rdK(t+2); rdV(t+1)
            for r in range(10): a(f"v_exp_f32 v{cur+r}, v{cur+r}")
            a(f"v_smfmac_f32_32x32x32_bf16 {vr(O,16)}, {vr(VF+8*(t%2),4)}, {vr(cur,8)}, v9")
            for r in range(10, 16): a(f"v_exp_f32 v{cur+r}, v{cur+r}")
            if t == U-1:
                a(f"v_add_u32 v10, {U*2048}, v10")
                a(f"v_add_u32 v11, {U*2048}, v11")
                a("s_sub_u32 s42, s42, 1")
                a("s_cmp_lg_u32 s42, 0")
            else:
                a("s_nop 1")
            a(f"v_smfmac_f32_32x32x32_bf16 {vr(O,16)}, {vr(VF+8*(t%2)+4,4)}, {vr(cur+8,8)}, v9")
        a(f"s_cbranch_scc1 {lbl}")
        a("s_waitcnt lgkmcnt(0)")
        a("s_nop 15")
    mainloop("L2_loop", "0")
    a(f"v_max3_f32 v12, |v{O}|, |v{O+1}|, |v{O+2}|")
    a(f"v_max3_f32 v12, |v{O+3}|, |v{O+4}|, v12")
    a(f"v_max3_f32 v12, |v{O+5}|, |v{O+6}|, v12")
    a(f"v_max_f32 v12, |v{O+7}|, v12")
    a("s_mov_b32 s43, 0x1f800000")
    a("s_mov_b32 s44, 0x5f800000")
    a("s_mov_b32 s45, 0x7f000000")
    a(f"v_cmp_nlt_f32 s[46:47], s43, v{O+8}")
    a(f"v_cmp_ngt_f32 s[48:49], s44, v{O+8}")
    a("v_cmp_ngt_f32 vcc, s45, v12")
    a("s_or_b64 s[46:47], s[46:47], s[48:49]")
    a("s_or_b64 s[46:47], s[46:47], vcc")
    a("s_cbranch_scc0 L2_fin")
    a("v_mov_b32 v10, v2")
    a("v_mov_b32 v13, 0xff800000")
    a("s_mov_b32 s42, 64")
    a.label("L2_max")
    a(f"ds_read_b128 {vr(KF,4)}, v10")
    a("v_add_u32 v10, 2048, v10")
    a("s_waitcnt lgkmcnt(0)")
    a(f"v_mfma_f32_32x32x16_bf16 {vr(X,16)}, {vr(KF,4)}, v[4:7], 0")
    a("s_nop 15")
    for r in range(8): a(f"v_max3_f32 v13, v{X+2*r}, v{X+2*r+1}, v13")
    a("s_sub_u32 s42, s42, 1")
    a("s_cmp_lg_u32 s42, 0")
    a("s_cbranch_scc1 L2_max")
    a("v_mov_b32 v14, v13")
    a("s_nop 1")
    a("v_permlane32_swap_b32 v13, v14")
    a("s_nop 1")
    a("v_max_f32 v13, v13, v14")
    for i in range(16): a(f"v_sub_f32 v{NM+i}, 0, v13")
    for i in range(16): a(f"v_mov_b32 v{O+i}, 0")
    a("v_mov_b32 v10, v2")
    a(f"v_subrev_u32 v11, {64*2048}, v11")
    mainloop("L2_loop2", vr(NM, 16))
    a.label("L2_fin")
    a(f"v_rcp_f32 v12, v{O+8}")
    a("s_nop 0")
    a("v_mul_f32 v12, v12, v8")
    for r in range(8): a(f"v_mul_f32 v{O+r}, v{O+r}, v12")
    for r in range(4): a(f"v_cvt_pk_bf16_f32 v{X+r}, v{O+2*r}, v{O+2*r+1}")
    a("s_mul_i32 s37, s35, 144")
    a("s_add_u32 s37, s37, s36")
    a("s_add_u32 s37, s37, 112")
    a("s_lshl_b32 s37, s37, 10")
    a(f"buffer_store_dwordx4 {vr(X,4)}, v2, s[24:27], s37 offen")
    a.label("L2_end")
    a("s_endpgm")
    return name, 104, 131072 + 4096 + 2048

def k3(a):
    name = "outp_kernel"
    kernel_head(a, name)
    a.vm = []
    a("s_cmp_ge_u32 s2, 256")
    a("s_cbranch_scc1 L3_end")
    a("s_load_dwordx2 s[36:37], s[0:1], 32")
    a("s_load_dwordx2 s[38:39], s[0:1], 64")
    a("s_load_dwordx2 s[40:41], s[0:1], 80")
    a("s_load_dwordx2 s[50:51], s[0:1], 96")
    a("v_lshrrev_b32 v1, 6, v0")
    a("v_and_b32 v0, 63, v0")
    a("s_nop 0")
    a("v_readfirstlane_b32 s32, v1")
    a("v_lshlrev_b32 v2, 4, v0")
    a("s_and_b32 s33, s2, 7")
    a("s_lshr_b32 s34, s2, 3")
    a("s_lshl_b32 s33, s33, 2")
    a("s_and_b32 s35, s34, 3")
    a("s_add_u32 s33, s33, s35")
    a("s_lshr_b32 s34, s34, 2")
    a("s_waitcnt lgkmcnt(0)")
    srd(a, 4, 36, 524288)
    srd(a, 8, 38, 1835008)
    srd(a, 12, 40, 2097152)
    srd(a, 24, 50, WS_SZ)
    a("v_and_b32 v3, 31, v0")
    a("v_lshlrev_b32 v3, 2, v3")
    a("s_lshl_b32 s37, s33, 8")
    a(f"s_add_u32 s37, s37, {WS_G}")
    a.vmem("buffer_load_dword v8, v3, s[24:27], s37 offen", "g")
    a.vmem("buffer_load_dword v9, v3, s[24:27], s37 offen offset:128", "g")
    a("v_lshrrev_b32 v5, 3, v0")
    a("v_bfe_u32 v6, v0, 2, 1")
    a("v_bfe_u32 v7, v0, 4, 1")
    a("v_xor_b32 v6, v6, v7")
    a("v_lshlrev_b32 v6, 6, v6")
    a("v_lshl_add_u32 v4, v5, 10, v6")
    a("v_and_b32 v6, 3, v0")
    a("v_lshl_add_u32 v4, v6, 4, v4")
    a("s_lshl_b32 s37, s34, 7")
    a("v_add_u32 v4, s37, v4")
    a("v_bfe_u32 v5, v0, 2, 2")
    a("v_lshrrev_b32 v6, 5, v0")
    a("v_lshl_add_u32 v6, v6, 2, v5")
    a("v_lshlrev_b32 v6, 7, v6")
    a("v_bfe_u32 v7, v0, 3, 1")
    a("v_lshl_add_u32 v6, v7, 6, v6")
    a("v_bfe_u32 v7, v0, 4, 1")
    a("v_lshl_add_u32 v6, v7, 5, v6")
    a("v_and_b32 v7, 3, v0")
    a("v_lshl_add_u32 v6, v7, 3, v6")
    RING = 9
    a(f"s_mul_i32 s60, s32, {RING*2048}")
    a("v_add_u32 v10, s60, v6")
    a("v_xor_b32 v11, 64, v10")
    a("s_mul_i32 s42, s33, 288")
    a("s_mul_i32 s37, s32, 14")
    a("s_add_u32 s44, s42, s37")
    a("s_lshl_b32 s44, s44, 10")
    a("s_lshl_b32 s37, s32, 2")
    a("s_add_u32 s46, s42, s37")
    a("s_add_u32 s46, s46, 112")
    a("s_lshl_b32 s46, s46, 10")
    a("s_mul_i32 s48, s32, 229376")
    a("s_lshl_b32 s49, s32, 16")
    ACC, BF, AF = 16, 80, 224
    NS = 18
    def issue(s):
        slot = s % RING
        for n in range(2):
            a(f"s_add_u32 m0, s60, {slot*2048 + n*1024}")
            if s < 14:
                a(f"s_add_u32 s62, s48, {s*16384 + n*8192}")
                a.vmem("buffer_load_dwordx4 v4, s[8:11], s62 offen lds", f"s{s}")
            else:
                a(f"s_add_u32 s62, s49, {(s-14)*16384 + n*8192}")
                a.vmem("buffer_load_dwordx4 v4, s[4:7], s62 offen lds", f"s{s}")
        for i in range(2):
            if s < 14: a(f"s_add_u32 s62, s44, {s*1024 + i*147456}")
            else: a(f"s_add_u32 s62, s46, {(s-14)*1024 + i*147456}")
            a.vmem(f"buffer_load_dwordx4 {vr(BF+8*s+4*i,4)}, v2, s[24:27], s62 offen", f"s{s}")
    for s in range(RING): issue(s)
    for i in range(64): a(f"v_mov_b32 v{ACC+i}, 0")
    def rd(s):
        slot = s % RING
        b = AF + 8*(s % 2)
        for j in range(2):
            for r in range(2):
                a(f"ds_read_b64_tr_b16 {vr(b+4*j+2*r,2)}, v{10+j} offset:{slot*2048 + r*1024}")
    a.wait_vm("s0")
    rd(0)
    for s in range(NS):
        if s + 1 < NS:
            a.wait_vm(f"s{s+1}")
            rd(s+1)
            a("s_waitcnt lgkmcnt(4)")
        else:
            a("s_waitcnt lgkmcnt(0)")
        if s + RING < NS: issue(s + RING)
        if s == 14:
            a("s_nop 15")
            a("v_sub_f32 v8, 1.0, v8")
            a("v_sub_f32 v9, 1.0, v9")
            for i in range(64): a(f"v_mul_f32 v{ACC+i}, v{ACC+i}, v{8 + i//32}")
            a("s_nop 1")
        b = AF + 8*(s % 2)
        for i in range(2):
            for j in range(2):
                d = ACC + (i*2+j)*16
                a(f"v_mfma_f32_32x32x16_bf16 {vr(d,16)}, {vr(b+4*j,4)}, {vr(BF+8*s+4*i,4)}, {vr(d,16)}")
    a("s_nop 15")
    a("s_barrier")
    a("v_and_b32 v5, 31, v0")
    a("v_lshrrev_b32 v6, 5, v0")
    a("v_and_b32 v7, 15, v0")
    a("v_xor_b32 v6, v6, v7")
    a("v_lshlrev_b32 v6, 4, v6")
    a("v_lshl_add_u32 v6, v5, 8, v6")
    a("s_lshl_b32 s37, s32, 14")
    a("v_add_u32 v6, s37, v6")
    for q2 in range(8):
        a(f"v_xor_b32 v{BF+q2}, {q2*32}, v6")
    for i in range(2):
        for j in range(2):
            for g in range(4):
                d = ACC + (i*2+j)*16 + 4*g
                a(f"ds_write_b128 v{BF + 4*j + g}, {vr(d,4)} offset:{i*8192}")
    a("s_waitcnt lgkmcnt(0)")
    a("s_barrier")
    a("v_lshrrev_b32 v5, 3, v0")
    a("s_lshl_b32 s37, s32, 3")
    a("v_add_u32 v5, s37, v5")
    a("v_and_b32 v6, 7, v0")
    a("v_lshlrev_b32 v6, 1, v6")
    a("v_and_b32 v7, 15, v5")
    a("v_xor_b32 v6, v6, v7")
    a("v_lshlrev_b32 v6, 4, v6")
    a("v_lshl_add_u32 v6, v5, 8, v6")
    a("v_xor_b32 v7, 16, v6")
    a("v_add_u32 v12, 65536, v6")
    a("v_add_u32 v13, 65536, v7")
    for w in range(8):
        a(f"ds_read_b128 {vr(ACC+8*w,4)}, v{6 if w<4 else 12} offset:{(w%4)*16384}")
        a(f"ds_read_b128 {vr(ACC+8*w+4,4)}, v{7 if w<4 else 13} offset:{(w%4)*16384}")
    for w in range(1, 8):
        a(f"s_waitcnt lgkmcnt({14-2*w})")
        for r in range(8): a(f"v_add_f32 v{ACC+r}, v{ACC+r}, v{ACC+8*w+r}")
    for r in range(4): a(f"v_cvt_pk_bf16_f32 v{BF+r}, v{ACC+2*r}, v{ACC+2*r+1}")
    a("v_and_b32 v6, 7, v0")
    a("v_lshlrev_b32 v6, 4, v6")
    a("v_lshl_add_u32 v6, v5, 10, v6")
    a("s_lshl_b32 s37, s33, 16")
    a("s_lshl_b32 s38, s34, 7")
    a("s_add_u32 s37, s37, s38")
    a(f"buffer_store_dwordx4 {vr(BF,4)}, v6, s[12:15], s37 offen")
    a.label("L3_end")
    a("s_endpgm")
    return name, 240, 8*RING*2048

def main(out):
    a = Asm()
    ks = [k1(a), k2(a), k3(a)]
    for n, v, l in ks: kernel_desc(a, n, v)
    hdr = "".join(f"; @launch kernel={n} grid=(256,1,1) block=(512,1,1) lds={l}\n" for n, v, l in ks)
    hdr += '.amdgcn_target "amdgcn-amd-amdhsa--gfx950"\n'
    open(out, "w").write(hdr + a.text())

if __name__ == "__main__":
    main(sys.argv[1])
```

```python
class Asm:
    def __init__(self):
        self.lines = []
        self.vm = []
    def __call__(self, s):
        for l in s.split("\n"):
            l = l.strip()
            if l: self.lines.append("    " + l)
    def label(self, l): self.lines.append(l + ":")
    def comment(self, c): self.lines.append("    ; " + c)
    def raw(self, s): self.lines.append(s)
    def vmem(self, s, tag):
        self(s); self.vm.append(tag)
    def vm_n(self, tag):
        idx = max(i for i, t in enumerate(self.vm) if t == tag)
        return len(self.vm) - 1 - idx
    def wait_vm(self, tag, extra=""):
        n = self.vm_n(tag)
        assert n <= 63, n
        self(f"s_waitcnt vmcnt({n}){extra}")
        self.vm = self.vm[len(self.vm) - n:] if n else []
    def text(self): return "\n".join(self.lines) + "\n"

def vr(a, n=1):
    return f"v{a}" if n == 1 else f"v[{a}:{a+n-1}]"
def sr(a, n=1):
    return f"s{a}" if n == 1 else f"s[{a}:{a+n-1}]"

def srd(a, d, ptr, nbytes):
    a(f"s_mov_b32 s{d}, s{ptr}")
    a(f"s_and_b32 s{d+1}, s{ptr+1}, 0xffff")
    a(f"s_mov_b32 s{d+2}, {nbytes}")
    a(f"s_mov_b32 s{d+3}, 0x00020000")

def kernel_head(a, name):
    a.raw(".text")
    a.raw(f".globl {name}")
    a.raw(".p2align 8")
    a.raw(f".type {name},@function")
    a.label(name)

def kernel_desc(a, name, vgpr, sgpr=102, accum=None):
    if accum is None: accum = (vgpr + 3) // 4 * 4
    a.raw('.section .rodata,"a"')
    a.raw(".p2align 6")
    a.raw(f".amdhsa_kernel {name}")
    a.raw(f"  .amdhsa_next_free_vgpr {vgpr}")
    a.raw(f"  .amdhsa_next_free_sgpr {sgpr}")
    a.raw(f"  .amdhsa_accum_offset {accum}")
    a.raw("  .amdhsa_group_segment_fixed_size 0")
    a.raw("  .amdhsa_kernarg_size 104")
    a.raw("  .amdhsa_user_sgpr_count 2")
    a.raw("  .amdhsa_user_sgpr_kernarg_segment_ptr 1")
    a.raw("  .amdhsa_system_sgpr_workgroup_id_x 1")
    a.raw(".end_amdhsa_kernel")

STAMP = False
WS_STAMP = 0x1000000
def stamp(a, i):
    if not STAMP: return
    a(f"s_memtime s[{84+2*i}:{85+2*i}]")
def stamp_real(a, i):
    if not STAMP: return
    a(f"s_memrealtime s[{84+2*i}:{85+2*i}]")
def stamp_dump(a, kidx, wsptr, wave_s, vtmp):
    if not STAMP: return
    a("s_waitcnt lgkmcnt(0)")
    a(f"s_mov_b32 s76, s{wsptr}")
    a(f"s_and_b32 s77, s{wsptr+1}, 0xffff")
    a("s_mov_b32 s78, 0x2000000")
    a("s_mov_b32 s79, 0x00020000")
    a("s_lshl_b32 s80, s2, 4")
    a(f"s_add_u32 s80, s80, s{wave_s}")
    a("s_lshl_b32 s80, s80, 5")
    a(f"s_add_u32 s80, s80, {WS_STAMP + kidx*0x40000}")
    a(f"v_mov_b32 v{vtmp}, 0")
    for i in range(8):
        a(f"v_mov_b32 v{vtmp+1}, s{84+2*i}")
        a(f"buffer_store_dword v{vtmp+1}, v{vtmp}, s[76:79], s80 offen offset:{4*i}")
        a("s_nop 1")
```

```python
import sys, struct, os
import asmlib
from asmlib import *

def f32hex(x): return "0x%08x" % struct.unpack("<I", struct.pack("<f", x))[0]
LOG2E = 1.4426950408889634
NAME = "gated_mix__grouped_kv_mqa__glu_gated_glu__prompt_kernel"
WS_HO = 0
WS_KV = 0x900000
WS_G  = 0x920000
WS_FH = 0x922000
WS_FO = 0x924000
WS_SZ = 0x926000
ROT = int(os.environ.get("ROT", 1))
SPIN = 1 << 20

S_X, S_WS, S_A, S_B, S_C, S_DBG = 4, 8, 12, 16, 20, 24
RB, CB, ROTS, II, WV = 28, 29, 30, 31, 32
TP, CP = 33, 34
TB = 35
P_X, P_WQ, P_WK, P_WV, P_WO, P_G, P_U, P_D, P_GW, P_OUT, P_DBG, P_WS = 36, 38, 40, 42, 44, 48, 50, 52, 54, 56, 58, 60
T0, T1, T2, T3, T4, T5 = 62, 63, 64, 65, 66, 67
XSO, WLD, CNT, NB = 68, 69, 70, 71
VM0, VM1 = 72, 73
HSO, WSO = 74, 75

STG = 49152
RING = 65536
KVA, KVBB = 98304, 0

def poll(a, lbl, vdst, vaddr, srd_, soff, first_issued):
    a(f"s_mov_b32 s{CNT}, {SPIN}")
    if first_issued: a(f"s_branch {lbl}_chk")
    a.label(lbl)
    a(f"buffer_load_dword v{vdst}, v{vaddr}, s[{srd_}:{srd_+3}], {soff} offen sc1")
    a("s_waitcnt vmcnt(0)")
    a.label(f"{lbl}_chk")
    a(f"v_cmp_ne_u32 vcc, 0, v{vdst}")
    a("s_cmp_eq_u64 vcc, -1")
    a(f"s_cbranch_scc1 {lbl}_ok")
    a("s_sleep 1")
    a(f"s_sub_u32 s{CNT}, s{CNT}, 1")
    a(f"s_cmp_lg_u32 s{CNT}, 0")
    a(f"s_cbranch_scc1 {lbl}")
    a.label(f"{lbl}_ok")

def gen(a):
    kernel_head(a, NAME)
    a("s_cmp_ge_u32 s2, 256")
    a("s_cbranch_scc1 L_end")
    stamp_real(a, 0); stamp(a, 1)
    a("s_load_dwordx16 s[36:51], s[0:1], 0")
    a("s_load_dwordx8 s[52:59], s[0:1], 64")
    a("s_load_dwordx2 s[60:61], s[0:1], 96")
    a("v_lshrrev_b32 v1, 6, v0")
    a("v_and_b32 v0, 63, v0")
    a("s_and_b32 s3, s2, 7")
    a(f"v_readfirstlane_b32 s{WV}, v1")
    a(f"s_lshr_b32 s{II}, s2, 3")
    a(f"s_and_b32 s{RB}, s3, 1")
    a(f"s_lshl_b32 s{RB}, s{RB}, 3")
    a(f"s_and_b32 s{T0}, s{II}, 7")
    a(f"s_add_u32 s{RB}, s{RB}, s{T0}")
    a(f"s_lshr_b32 s{CB}, s3, 1")
    a(f"s_lshl_b32 s{CB}, s{CB}, 2")
    a(f"s_lshr_b32 s{T1}, s{II}, 3")
    a(f"s_add_u32 s{CB}, s{CB}, s{T1}")
    if ROT:
        a(f"s_lshl_b32 s{T1}, s{T1}, 1")
        a(f"s_add_u32 s{ROTS}, s{T0}, s{T1}")
    else:
        a(f"s_mov_b32 s{ROTS}, 0")
    a(f"s_lshr_b32 s{TP}, s{WV}, 2")
    a(f"s_and_b32 s{CP}, s{WV}, 3")
    a("v_lshlrev_b32 v2, 4, v0")
    a("v_lshrrev_b32 v4, 4, v0")
    a(f"s_and_b32 s{T0}, s{WV}, 1")
    a(f"s_lshl_b32 s{T0}, s{T0}, 2")
    a(f"v_add_u32 v5, s{T0}, v4")
    a("v_and_b32 v6, 7, v0")
    a("v_xor_b32 v5, v5, v6")
    a("v_lshlrev_b32 v5, 4, v5")
    a("v_lshrrev_b32 v6, 3, v0")
    a("v_lshl_add_u32 v3, v6, 10, v5")
    a(f"s_lshl_b32 s{XSO}, s{RB}, 17")
    a(f"s_lshl_b32 s{T0}, s{WV}, 13")
    a(f"s_add_u32 s{XSO}, s{XSO}, s{T0}")
    a(f"s_lshl_b32 s{WLD}, s{WV}, 10")
    a("v_bfe_u32 v5, v0, 1, 3")
    a("v_lshlrev_b32 v6, 1, v4")
    a("v_xor_b32 v5, v5, v6")
    a(f"s_lshl_b32 s{T0}, s{WV}, 2")
    a(f"v_add_u32 v6, s{T0}, v4")
    a("v_and_b32 v7, 1, v0")
    a("v_lshlrev_b32 v7, 4, v7")
    a(f"s_mul_i32 s{T0}, s{CB}, 224")
    a(f"s_lshl_b32 s{T1}, s{CB}, 6")
    a("v_mul_u32_u24 v8, 3584, v6")
    a("v_add_u32 v8, v8, v7")
    a(f"v_add_u32 v8, s{T0}, v8")
    a("v_lshl_add_u32 v9, v6, 10, v7")
    a(f"v_add_u32 v9, s{T1}, v9")
    a("s_waitcnt lgkmcnt(0)")
    srd(a, S_X, P_X, 2097152)
    for half in range(2):
        pg = P_G if half == 0 else P_U
        if half: a("v_xor_b32 v5, 1, v5")
        a("v_lshl_add_u32 v16, v5, 5, v8")
        if half: a("v_add_u32 v9, 32, v9")
        a("v_cmp_eq_u32 vcc, 7, v5")
        a(f"v_mov_b32 v17, s{pg}")
        a(f"v_mov_b32 v18, s{P_WQ}")
        a("v_cndmask_b32 v16, v16, v9, vcc")
        a("v_cndmask_b32 v17, v17, v18, vcc")
        a(f"v_mov_b32 v18, s{pg+1}")
        a(f"v_mov_b32 v19, s{P_WQ+1}")
        a("v_cndmask_b32 v18, v18, v19, vcc")
        a(f"v_mov_b32 v{14+half}, {3584*32}")
        a(f"v_mov_b32 v19, {1024*32}")
        a(f"v_cndmask_b32 v{14+half}, v{14+half}, v19, vcc")
        a(f"v_add_co_u32 v{10+2*half}, vcc, v16, v17")
        a("s_nop 1")
        a(f"v_addc_co_u32 v{11+2*half}, vcc, 0, v18, vcc")

    def dma_chunk(c):
        st = c % 3
        a(f"s_add_u32 s{T0}, s{ROTS}, {c}")
        a(f"s_and_b32 s{T0}, s{T0}, 7")
        a(f"s_lshl_b32 s{T1}, s{T0}, 7")
        a(f"s_add_u32 s{T1}, s{T1}, s{XSO}")
        a(f"s_lshl_b32 s{T0}, s{T0}, 1")
        a(f"s_add_u32 s{T2}, s{T0}, 1")
        for n in range(2):
            a(f"s_add_u32 m0, s{WLD}, {st*STG + n*8192}")
            if n: a(f"s_add_u32 s{T1}, s{T1}, 65536")
            else: a("s_nop 0")
            a.vmem(f"buffer_load_dwordx4 v3, s[{S_X}:{S_X+3}], s{T1} offen lds", f"c{c}")
        for half in range(2):
            for n in range(2):
                a(f"s_add_u32 m0, s{WLD}, {st*STG + 16384 + half*16384 + n*8192}")
                a(f"v_mad_u64_u32 v[16:17], s[{T4}:{T5}], v{14+half}, s{T0 if n==0 else T2}, v[{10+2*half}:{11+2*half}]")
                a.vmem("global_load_lds_dwordx4 v[16:17], off", f"c{c}")

    srd(a, S_WS, P_WS, WS_SZ)
    srd(a, S_DBG, P_DBG, 256)
    PSC = 2*STG
    PST = 4608
    a(f"s_cmp_ge_u32 s{II}, 8")
    a("s_cbranch_scc1 L_np0")
    srd(a, S_A, P_WK, 16384)
    srd(a, S_B, P_WV, 16384)
    srd(a, S_C, P_GW, 1024)
    a(f"s_lshl_b32 s{TB}, s{RB}, 2")
    a(f"s_lshr_b32 s{T0}, s{CB}, 2")
    a(f"s_add_u32 s{TB}, s{TB}, s{T0}")
    a("v_and_b32 v5, 31, v0")
    a("v_lshrrev_b32 v6, 5, v0")
    a("v_lshlrev_b32 v6, 6, v6")
    a("v_lshl_add_u32 v5, v5, 10, v6")
    a(f"s_lshl_b32 s{T0}, s{TB}, 15")
    a(f"s_lshl_b32 s{T1}, s{WV}, 7")
    a(f"s_add_u32 s{T0}, s{T0}, s{T1}")
    for j in range(4):
        a(f"buffer_load_dwordx4 {vr(32+4*j,4)}, v5, s[{S_X}:{S_X+3}], s{T0} offen offset:{16*j}")
    a(f"s_mul_i32 s{T2}, s{WV}, {PST}")
    a(f"s_add_u32 s{T2}, s{T2}, {PSC}")
    a(f"s_lshl_b32 s{T3}, s{WV}, 11")
    for m, sd in enumerate((S_A, S_B)):
        a(f"s_add_u32 m0, s{T2}, {m*2176}")
        a("s_nop 0")
        a(f"buffer_load_dwordx4 v2, s[{sd}:{sd+3}], s{T3} offen lds")
        a(f"buffer_load_dwordx4 v2, s[{sd}:{sd+3}], s{T3} offen offset:1024 lds")
    for j in range(4):
        a(f"buffer_load_dwordx4 {vr(48+4*j,4)}, v6, s[{S_C}:{S_C+3}], s{T1} offen offset:{16*j}")
    a.label("L_np0")
    dma_chunk(0); dma_chunk(1)
    a("v_and_b32 v5, 31, v0")
    a("v_bfe_u32 v6, v0, 1, 3")
    a("v_lshrrev_b32 v7, 5, v0")
    a("v_xor_b32 v6, v6, v7")
    a("v_lshlrev_b32 v6, 4, v6")
    a("v_lshl_add_u32 v20, v5, 7, v6")
    a(f"s_lshl_b32 s{T0}, s{TP}, 13")
    a(f"v_add_u32 v20, s{T0}, v20")
    a("v_xor_b32 v21, 32, v20")
    a("v_xor_b32 v22, 64, v20")
    a("v_xor_b32 v23, 0x60, v20")
    for k in range(4): a(f"v_add_u32 v{24+k}, {2*STG}, v{20+k}")
    a("v_and_b32 v5, 1, v4")
    a("v_bfe_u32 v6, v0, 2, 2")
    a("v_lshl_add_u32 v19, v7, 3, v6")
    a("v_lshl_add_u32 v8, v6, 1, v5")
    a(f"s_lshl_b32 s{T0}, s{CP}, 1")
    a(f"v_xor_b32 v8, s{T0}, v8")
    a("v_lshlrev_b32 v8, 5, v8")
    a("v_lshl_add_u32 v8, v19, 8, v8")
    a("v_lshl_add_u32 v8, v5, 14, v8")
    a("v_and_b32 v9, 3, v0")
    a("v_lshl_add_u32 v8, v9, 3, v8")
    AW = 128
    for st in range(3):
        a(f"v_add_u32 v{AW+2*st}, {st*STG + 16384}, v8")
        a(f"v_xor_b32 v{AW+1+2*st}, 32, v{AW+2*st}")
    ACC, FR = 64, 32
    a(f"s_cmp_ge_u32 s{II}, 8")
    a("s_cbranch_scc1 L_np1")
    a("v_mul_u32_u24 v5, 2176, v5")
    a("v_lshl_add_u32 v5, v7, 10, v5")
    a("v_lshl_add_u32 v5, v6, 5, v5")
    a("v_lshl_add_u32 v5, v9, 3, v5")
    a(f"s_mul_i32 s{T2}, s{WV}, {PST}")
    a(f"s_add_u32 s{T2}, s{T2}, {PSC}")
    a(f"v_add_u32 v5, s{T2}, v5")
    a("s_waitcnt vmcnt(12)")
    for j in range(4):
        for rd in range(2):
            a(f"ds_read_b64_tr_b16 {vr(96+4*j+2*rd,2)}, v5 offset:{j*256+rd*128}")
    for j in range(4):
        a(f"v_mfma_f32_32x32x16_bf16 v[80:95], {vr(48+4*j,4)}, {vr(32+4*j,4)}, {'0' if j==0 else 'v[80:95]'}")
    a("s_waitcnt lgkmcnt(0)")
    for j in range(4):
        a(f"v_mfma_f32_32x32x16_bf16 v[64:79], {vr(96+4*j,4)}, {vr(32+4*j,4)}, {'0' if j==0 else 'v[64:79]'}")
    a(f"v_add_u32 v5, s{T2}, v2")
    a("v_lshlrev_b32 v6, 2, v0")
    a(f"v_add_u32 v8, s{T2}, v6")
    a("s_nop 12")
    a("ds_write_b128 v5, v[64:67]")
    a("ds_write_b128 v5, v[68:71] offset:1024")
    for r in range(8): a(f"ds_write_b32 v8, v{72+r} offset:{2048+256*r}")
    a("ds_write_b32 v8, v80 offset:4096")
    a("s_waitcnt lgkmcnt(0)")
    a("s_barrier")
    a(f"s_cmp_ge_u32 s{WV}, 4")
    a("s_cbranch_scc1 L_np1")
    a(f"s_cmp_eq_u32 s{WV}, 3")
    a("s_cbranch_scc1 L_p3")
    a(f"s_cmp_eq_u32 s{WV}, 2")
    a("s_cbranch_scc1 L_p2")
    a(f"v_add_u32 v5, {PSC}, v2")
    a(f"v_add_u32 v6, 1024, v5")
    a(f"s_cmp_eq_u32 s{WV}, 0")
    a("s_cbranch_scc1 L_p01")
    a("v_bfe_u32 v5, v0, 3, 1")
    a("v_lshlrev_b32 v5, 2, v5")
    a("v_and_b32 v6, 3, v0")
    a("v_add_u32 v5, v5, v6")
    a("v_lshlrev_b32 v5, 8, v5")
    a("v_bfe_u32 v6, v0, 2, 1")
    a("v_lshl_add_u32 v5, v6, 7, v5")
    a("v_lshl_add_u32 v5, v4, 5, v5")
    a(f"v_add_u32 v5, {PSC+2048}, v5")
    a("v_add_u32 v6, 16, v5")
    a.label("L_p01")
    for w in range(8):
        a(f"ds_read_b128 {vr(64+8*w,4)}, v5 offset:{w*PST}")
        a(f"ds_read_b128 {vr(68+8*w,4)}, v6 offset:{w*PST}")
    for w in range(1, 8):
        a(f"s_waitcnt lgkmcnt({14-2*w})")
        for r in range(8): a(f"v_add_f32 v{64+r}, v{64+r}, v{64+8*w+r}")
    for r in range(4): a(f"v_cvt_pk_bf16_f32 v{32+r}, v{64+2*r}, v{65+2*r}")
    a(f"s_lshl_b32 s{T0}, s{TB}, 11")
    a(f"s_add_u32 s{T0}, s{T0}, s{WLD}")
    a(f"s_add_u32 s{T0}, s{T0}, {WS_KV}")
    a(f"buffer_store_dwordx4 v[32:35], v2, s[{S_WS}:{S_WS+3}], s{T0} offen sc1")
    a("s_branch L_np1")
    a.label("L_p2")
    a("v_lshlrev_b32 v6, 2, v0")
    a(f"v_add_u32 v5, {PSC+4096}, v6")
    for w in range(8): a(f"ds_read_b32 v{64+w}, v5 offset:{w*PST}")
    a("s_waitcnt lgkmcnt(0)")
    for w in range(1, 8): a(f"v_add_f32 v64, v64, v{64+w}")
    a(f"v_mul_f32 v64, {f32hex(-LOG2E)}, v64")
    a("v_exp_f32 v64, v64")
    a("v_and_b32 v6, 0x7c, v6")
    a("v_add_f32 v64, 1.0, v64")
    a("v_rcp_f32 v64, v64")
    a(f"s_lshl_b32 s{T0}, s{TB}, 7")
    a(f"s_add_u32 s{T0}, s{T0}, {WS_G}")
    a(f"buffer_store_dword v64, v6, s[{S_WS}:{S_WS+3}], s{T0} offen sc1")
    a("s_branch L_np1")
    a.label("L_p3")
    a("v_lshlrev_b32 v6, 2, v0")
    a("v_mov_b32 v64, 0")
    a(f"s_lshl_b32 s{T0}, s{TB}, 8")
    a(f"s_add_u32 s{T0}, s{T0}, {WS_FH}")
    a(f"buffer_store_dword v64, v6, s[{S_WS}:{S_WS+3}], s{T0} offen sc1")
    a.label("L_np1")
    for i in range(64): a(f"v_mov_b32 v{ACC+i}, 0")

    def reads(c, ks, buf):
        st = c % 3
        b = FR + 16 * buf
        ax = (20 + ks) if st < 2 else (24 + ks)
        xo = st*STG if st < 2 else 0
        a(f"ds_read_b128 {vr(b,4)}, v{ax} offset:{xo}")
        a(f"ds_read_b64_tr_b16 {vr(b+8,2)}, v{AW+2*st} offset:{ks*4096}")
        a(f"ds_read_b64_tr_b16 {vr(b+10,2)}, v{AW+2*st} offset:{ks*4096+1024}")
        a(f"ds_read_b128 {vr(b+4,4)}, v{ax} offset:{xo + 4096}")
        a(f"ds_read_b64_tr_b16 {vr(b+12,2)}, v{AW+1+2*st} offset:{ks*4096}")
        a(f"ds_read_b64_tr_b16 {vr(b+14,2)}, v{AW+1+2*st} offset:{ks*4096+1024}")
    def mfmas(buf):
        b = FR + 16 * buf
        for i in range(2):
            for j in range(2):
                d = ACC + (i*2+j)*16
                a(f"v_mfma_f32_32x32x16_bf16 {vr(d,16)}, {vr(b+8+4*j,4)}, {vr(b+4*i,4)}, {vr(d,16)}")
    def kv_dma(lds0, n0, cnt, tag):
        for n in range(cnt):
            a(f"s_add_u32 s{T0}, s{T3}, {n0 + 8*n}")
            a(f"s_and_b32 s{T0}, s{T0}, 127")
            a(f"s_lshl_b32 s{T0}, s{T0}, 10")
            a(f"s_add_u32 m0, s{WLD}, {lds0 + n*8192}")
            a(f"s_add_u32 s{T0}, s{T0}, {WS_KV}")
            a.vmem(f"buffer_load_dwordx4 v2, s[{S_WS}:{S_WS+3}], s{T0} offen sc1 lds", tag)
    GA, GD0, GD1, FLG, L4 = 28, 29, 30, 31, 18
    a(f"v_lshlrev_b32 v{L4}, 2, v0")
    stamp(a, 2)
    a.wait_vm("c0")
    a("s_barrier")
    reads(0, 0, 0)
    dma_chunk(2)
    buf = 0
    for c in range(8):
        for ks in range(4):
            if ks < 3:
                reads(c, ks+1, buf ^ 1)
                a("s_waitcnt lgkmcnt(6)")
            else:
                if c < 7: a.wait_vm(f"c{c+1}", " lgkmcnt(0)")
                else: a("s_waitcnt lgkmcnt(0)")
                if c == 5:
                    a(f"s_cmp_lg_u32 s{WV}, 0")
                    a("s_cbranch_scc1 L_kvp_ok")
                    poll(a, "L_kvp", FLG, L4, S_DBG, "0", True)
                a("s_barrier")
                if c < 7: reads(c+1, 0, buf ^ 1)
                if c == 0:
                    a(f"s_cmp_ge_u32 s{II}, 8")
                    a("s_cbranch_scc1 L_nf")
                    a(f"s_cmp_lg_u32 s{WV}, 0")
                    a("s_cbranch_scc1 L_nf")
                    a(f"s_lshl_b32 s{T0}, s2, 2")
                    a("v_mov_b32 v16, 0")
                    a("v_mov_b32 v17, 1")
                    a(f"buffer_store_dword v17, v16, s[{S_DBG}:{S_DBG+3}], s{T0} offen sc1")
                    a.label("L_nf")
                if c == 4:
                    a(f"s_cmp_lg_u32 s{WV}, 0")
                    a("s_cbranch_scc1 L_np4")
                    a(f"buffer_load_dword v{FLG}, v{L4}, s[{S_DBG}:{S_DBG+3}], 0 offen sc1")
                    a.label("L_np4")
                if c + 3 < 8: dma_chunk(c+3)
                if c == 5:
                    if ROT:
                        a(f"s_lshl_b32 s{T3}, s{II}, 2")
                        a(f"s_add_u32 s{T3}, s{T3}, s{WV}")
                    else:
                        a(f"s_mov_b32 s{T3}, s{WV}")
                    kv_dma(KVA, 0, 8, "kv")
                    a(f"s_and_b32 s{T0}, s{CB}, 1")
                    a(f"s_lshl_b32 s{TB}, s{RB}, 1")
                    a(f"s_add_u32 s{TB}, s{TB}, s{T0}")
                    a(f"s_lshr_b32 s{NB}, s{CB}, 1")
                    a(f"v_and_b32 v16, 0x7c, v{L4}")
                    a(f"s_lshl_b32 s{T0}, s{RB}, 9")
                    a(f"s_lshl_b32 s{T1}, s{CP}, 7")
                    a(f"s_add_u32 s{T0}, s{T0}, s{T1}")
                    a(f"s_add_u32 s{T0}, s{T0}, {WS_G}")
                    a.vmem(f"buffer_load_dword v{GA}, v16, s[{S_WS}:{S_WS+3}], s{T0} offen sc1", "kv")
                    a(f"s_lshl_b32 s{T0}, s{TB}, 8")
                    a(f"s_add_u32 s{T0}, s{T0}, {WS_G}")
                    a.vmem(f"buffer_load_dword v{GD0}, v16, s[{S_WS}:{S_WS+3}], s{T0} offen sc1", "kv")
                    a.vmem(f"buffer_load_dword v{GD1}, v16, s[{S_WS}:{S_WS+3}], s{T0} offen offset:128 sc1", "kv")
                if c == 6: kv_dma(KVBB, 64, 6, "kv")
                if c == 7: kv_dma(KVBB + 49152, 112, 2, "kv")
            mfmas(buf)
            buf ^= 1
    a("s_nop 15")
    stamp(a, 3)
    a(f"s_lshl_b32 s{T0}, s{RB}, 2")
    a(f"s_lshl_b32 s{T1}, s{TP}, 1")
    a(f"s_add_u32 s{T0}, s{T0}, s{T1}")
    a(f"s_mul_i32 s{T0}, s{T0}, 144")
    a(f"s_mul_i32 s{T1}, s{CB}, 7")
    a(f"s_add_u32 s{T0}, s{T0}, s{T1}")
    a(f"s_lshl_b32 s{T1}, s{CP}, 1")
    a(f"s_add_u32 s{T0}, s{T0}, s{T1}")
    a(f"s_lshl_b32 s{T0}, s{T0}, 10")
    a(f"s_add_u32 s{T1}, s{T0}, {144*1024}")
    a(f"s_mov_b32 s{T2}, {f32hex(-LOG2E)}")
    def h_tile(i, j):
        d = ACC + (i*2+j)*16
        for r in range(8): a(f"v_mul_f32 v{d+r}, s{T2}, v{d+r}")
        for r in range(8): a(f"v_exp_f32 v{d+r}, v{d+r}")
        for r in range(8): a(f"v_add_f32 v{d+r}, 1.0, v{d+r}")
        for r in range(8): a(f"v_rcp_f32 v{d+r}, v{d+r}")
        for r in range(8): a(f"v_mul_f32 v{d+r}, v{d+r}, v{d+8+r}")
        for r in range(4): a(f"v_cvt_pk_bf16_f32 v{d+8+r}, v{d+2*r}, v{d+2*r+1}")
        a(f"buffer_store_dwordx4 {vr(d+8,4)}, v2, s[{S_WS}:{S_WS+3}], s{T0+i} offen offset:{j*1024} sc1")
    a(f"s_cmp_eq_u32 s{CP}, 3")
    a("s_cbranch_scc1 L_qt")
    h_tile(0, 1); h_tile(1, 1)
    a("s_branch L_qte")
    a.label("L_qt")
    a(f"s_mov_b32 s{T3}, {f32hex(0.25*LOG2E)}")
    a(f"s_lshl_b32 s{T4}, s{TP}, 12")
    a(f"s_add_u32 s{T4}, s{T4}, {RING}")
    a(f"v_add_u32 v16, s{T4}, v2")
    for i in range(2):
        d = ACC + (i*2+1)*16
        for r in range(16): a(f"v_mul_f32 v{d+r}, s{T3}, v{d+r}")
        for r in range(8): a(f"v_cvt_pk_bf16_f32 v{32+8*i+r}, v{d+2*r}, v{d+2*r+1}")
        a(f"ds_write_b128 v16, {vr(32+8*i,4)} offset:{i*2048}")
        a(f"ds_write_b128 v16, {vr(36+8*i,4)} offset:{i*2048+1024}")
    a.label("L_qte")
    h_tile(0, 0); h_tile(1, 0)
    QF, X, Y, O, KF, VF = 4+4, 32, 48, 64, 96, 104
    DA, BF, AF = 128, 192, 208
    IDX, AK, AV, AT0, AT1, WDO = 19, 20, 21, 22, 23, 24
    a("s_waitcnt vmcnt(2) lgkmcnt(0)")
    a("s_barrier")
    a.vm = []
    a(f"s_lshl_b32 s{T0}, s{CP}, 11")
    a(f"s_add_u32 s{T0}, s{T0}, {RING}")
    a(f"v_add_u32 v16, s{T0}, v2")
    a(f"ds_read_b128 {vr(QF,4)}, v16")
    a(f"ds_read_b128 {vr(QF+4,4)}, v16 offset:1024")
    a(f"s_cmp_eq_u32 s{TP}, 0")
    a(f"s_cselect_b32 s{T0}, {KVA}, {KVBB}")
    a(f"v_add_u32 v{AK}, s{T0}, v2")
    a(f"ds_read_b128 {vr(KF,4)}, v{AK}")
    a("v_and_b32 v16, 15, v0")
    a("v_lshlrev_b32 v16, 4, v16")
    a("v_lshrrev_b32 v17, 5, v0")
    a("v_lshl_add_u32 v16, v17, 8, v16")
    a(f"s_add_u32 s{T0}, s{T0}, 1024")
    a(f"v_add_u32 v{AV}, s{T0}, v16")
    a(f"v_mov_b32 v{IDX}, 0xdddd")
    a("v_and_b32 v16, 27, v0")
    a("v_cmp_eq_u32 vcc, 16, v16")
    a("v_mov_b32 v17, 0x3f803f80")
    a("s_nop 0")
    a(f"v_cndmask_b32 v{VF}, 0, v17, vcc")
    for i in range(1, 16): a(f"v_mov_b32 v{VF+i}, v{VF}")
    a(f"s_mov_b32 s{VM0}, 0xffff")
    a(f"s_mov_b32 s{VM1}, 0xffff")
    a(f"s_mov_b64 exec, s[{VM0}:{VM1}]")
    a(f"ds_read_b128 {vr(VF,4)}, v{AV}")
    a(f"ds_read_b128 {vr(VF+4,4)}, v{AV} offset:512")
    a("s_mov_b64 exec, -1")
    for i in range(32): a(f"v_mov_b32 v{O+i}, 0")
    for r in range(8, 16): a(f"v_mov_b32 v{Y+r}, 0")
    a("s_waitcnt lgkmcnt(0)")
    a(f"v_mfma_f32_32x32x16_bf16 {vr(X,16)}, {vr(KF,4)}, {vr(QF,4)}, 0")
    for i in range(64): a(f"v_mov_b32 v{DA+i}, 0")
    srd(a, S_A, P_D, 1835008)
    srd(a, S_B, P_WO, 524288)
    srd(a, S_C, P_OUT, 2097152)
    a("v_lshrrev_b32 v5, 3, v0")
    a("v_bfe_u32 v6, v0, 2, 1")
    a("v_bfe_u32 v7, v0, 4, 1")
    a("v_xor_b32 v6, v6, v7")
    a("v_lshlrev_b32 v6, 6, v6")
    a(f"v_lshl_add_u32 v{WDO}, v5, 10, v6")
    a("v_and_b32 v6, 3, v0")
    a(f"v_lshl_add_u32 v{WDO}, v6, 4, v{WDO}")
    a(f"s_lshl_b32 s{T0}, s{NB}, 7")
    a(f"v_add_u32 v{WDO}, s{T0}, v{WDO}")
    a("v_bfe_u32 v5, v0, 2, 2")
    a("v_lshrrev_b32 v6, 5, v0")
    a("v_lshl_add_u32 v6, v6, 2, v5")
    a("v_lshlrev_b32 v6, 7, v6")
    a("v_bfe_u32 v5, v0, 3, 1")
    a("v_lshl_add_u32 v6, v5, 6, v6")
    a("v_lshl_add_u32 v6, v7, 5, v6")
    a("v_and_b32 v5, 3, v0")
    a("v_lshl_add_u32 v25, v5, 3, v6")
    a(f"s_lshl_b32 s{XSO}, s{WV}, 12")
    a(f"s_add_u32 s{XSO}, s{XSO}, {RING}")
    a(f"v_add_u32 v{AT0}, s{XSO}, v25")
    a(f"v_xor_b32 v{AT1}, 64, v{AT0}")
    a(f"s_mul_i32 s{HSO}, s{TB}, 288")
    a(f"s_mul_i32 s{T0}, s{WV}, 14")
    a(f"s_add_u32 s{HSO}, s{HSO}, s{T0}")
    a(f"s_lshl_b32 s{HSO}, s{HSO}, 10")
    a(f"s_mul_i32 s{WSO}, s{WV}, 229376")
    stamp(a, 4)

    def wdma(slot):
        for n in range(2):
            a(f"s_add_u32 m0, s{XSO}, {slot*2048 + n*1024}")
            a(f"s_add_u32 s{T0}, s{WSO}, {n*8192}") if n else a("s_nop 0")
            a(f"buffer_load_dwordx4 v{WDO}, s[{S_A}:{S_A+3}], s{T0 if n else WSO} offen lds")
        a(f"s_add_u32 s{WSO}, s{WSO}, 16384")
    def bload(bufi, i, off):
        a(f"s_add_u32 s{T0}, s{HSO}, {off + i*147456}")
        a(f"buffer_load_dwordx4 {vr(BF+8*bufi+4*i,4)}, v2, s[{S_WS}:{S_WS+3}], s{T0} offen sc1")
    def trread(slot, k):
        j, r = k // 2, k % 2
        a(f"ds_read_b64_tr_b16 {vr(AF+8*slot+4*j+2*r,2)}, v{AT0+j} offset:{slot*2048 + r*1024}")
    def gm(s, i, j):
        d = DA + (i*2+j)*16
        a(f"v_mfma_f32_32x32x16_bf16 {vr(d,16)}, {vr(AF+8*s+4*j,4)}, {vr(BF+8*s+4*i,4)}, {vr(d,16)}")

    def body(gemm):
        for u in range(8):
            t, hd = u // 2, u % 2
            cur, nxt = (X, Y) if hd == 0 else (Y, X)
            p, q = u // 4, u % 4
            def ex(lo, hi):
                for r in range(lo, hi): a(f"v_exp_f32 v{cur+r}, v{cur+r}")
            ex(0, 2)
            pv = (t - 1) % 2 if hd == 0 else t % 2
            a(f"v_smfmac_f32_32x32x32_bf16 {vr(O+16*(1-hd),16)}, {vr(VF+8*pv+4,4)}, {vr(nxt+8,8)}, v{IDX}")
            if hd == 0:
                a(f"s_mov_b64 exec, s[{VM0}:{VM1}]")
                a(f"ds_read_b128 {vr(VF+8*((t+1)%2),4)}, v{AV} offset:{(t+1)*2048}")
                a(f"ds_read_b128 {vr(VF+8*((t+1)%2)+4,4)}, v{AV} offset:{(t+1)*2048+512}")
                a("s_mov_b64 exec, -1")
            else:
                a("s_waitcnt lgkmcnt(0)")
            ex(2, 6)
            kb = t % 2 if hd == 0 else (t+1) % 2
            a(f"v_mfma_f32_32x32x16_bf16 {vr(nxt,16)}, {vr(KF+4*kb,4)}, {vr(QF+4*(1-hd),4)}, 0")
            if hd == 0:
                if gemm and q == 0: a("s_waitcnt vmcnt(4)")
                a(f"ds_read_b128 {vr(KF+4*((t+1)%2),4)}, v{AK} offset:{(t+1)*2048}")
                if gemm and q == 0: trread(p, 0); trread(p, 1)
            elif gemm and q == 1: wdma(p)
            elif gemm and q == 3: a("s_waitcnt vmcnt(7)")
            ex(6, 10)
            a(f"v_smfmac_f32_32x32x32_bf16 {vr(O+16*hd,16)}, {vr(VF+8*(t%2),4)}, {vr(cur,8)}, v{IDX}")
            if gemm and q == 0: trread(p, 2); trread(p, 3)
            if not gemm: a("s_nop 0")
            if u == 7:
                a(f"s_sub_u32 s{CNT}, s{CNT}, 1")
            ex(10, 14)
            if gemm:
                if q == 0:
                    gm(1-p, 1, 1); bload(1-p, 1, (p+1)*1024)
                elif q == 1: gm(p, 0, 0)
                elif q == 2:
                    gm(p, 0, 1); bload(p, 0, (p+2)*1024)
                else: gm(p, 1, 0)
            if u == 7:
                if gemm: a(f"s_add_u32 s{HSO}, s{HSO}, 2048")
                a(f"v_add_u32 v{AK}, 8192, v{AK}")
                a(f"v_add_u32 v{AV}, 8192, v{AV}")
                a(f"s_cmp_lg_u32 s{CNT}, 0")
            ex(14, 16)

    a(f"s_mov_b32 s{CNT}, 1")
    a(f"s_mov_b32 s{T5}, 0")
    a.label("L_a0")
    body(False)
    a(f"s_cmp_lg_u32 s{T5}, 0")
    a("s_cbranch_scc1 L_a1")
    a("s_waitcnt vmcnt(0)")
    a(f"s_lshl_b32 s{T0}, s{RB}, 1")
    a(f"s_add_u32 s{T0}, s{T0}, s{TP}")
    a(f"s_lshl_b32 s{T0}, s{T0}, 6")
    a(f"s_lshl_b32 s{T1}, s{CB}, 2")
    a(f"s_add_u32 s{T0}, s{T0}, s{T1}")
    a(f"s_add_u32 s{T0}, s{T0}, s{CP}")
    a(f"s_lshl_b32 s{T0}, s{T0}, 2")
    a(f"s_add_u32 s{T0}, s{T0}, {WS_FH}")
    a("v_mov_b32 v16, 0")
    a("v_mov_b32 v17, 1")
    a(f"buffer_store_dword v17, v16, s[{S_WS}:{S_WS+3}], s{T0} offen sc1")
    a("s_barrier")
    wdma(0); wdma(1)
    a(f"s_mov_b32 s{T5}, 1")
    a("s_branch L_a0")
    a.label("L_a1")
    a(f"s_lshl_b32 s{T5}, s{TB}, 8")
    a(f"s_add_u32 s{T5}, s{T5}, {WS_FH}")
    poll(a, "L_hp", FLG, L4, S_WS, f"s{T5}", False)
    bload(0, 0, 0); bload(0, 1, 0); bload(1, 0, 1024)
    for i in range(8): a(f"v_mov_b32 v{AF+8+i}, 0")
    for i in range(4): a(f"v_mov_b32 v{BF+12+i}, 0")
    a("s_waitcnt vmcnt(1)")
    a(f"s_mov_b32 s{CNT}, 6")
    a.label("L_g")
    body(True)
    a("s_cbranch_scc1 L_g")
    a(f"v_smfmac_f32_32x32x32_bf16 {vr(O+16,16)}, {vr(VF+8+4,4)}, {vr(Y+8,8)}, v{IDX}") if False else None
    a("s_nop 0")
    a(f"v_smfmac_f32_32x32x32_bf16 {vr(O+16,16)}, {vr(VF+8+4,4)}, {vr(Y+8,8)}, v{IDX}")
    gm(1, 1, 1)
    a("s_waitcnt vmcnt(1)")
    bload(1, 1, 1024)
    for k in range(4): trread(0, k)
    for k in range(4): trread(1, k)
    stamp(a, 5)
    a("s_waitcnt lgkmcnt(0)")
    a("s_nop 7")
    a(f"v_add_u32 v16, s{XSO}, v2")
    a(f"v_add_u32 v17, s{XSO}, v{L4}")
    a(f"s_cmp_eq_u32 s{TP}, 0")
    a("s_cbranch_scc1 L_x0")
    a(f"ds_write_b128 v16, {vr(O,4)}")
    a(f"ds_write_b128 v16, {vr(O+4,4)} offset:1024")
    a(f"ds_write_b32 v17, v{O+8} offset:2048")
    for r in range(9): a(f"v_mov_b32 v{O+r}, v{O+16+r}")
    for r in range(4): a(f"v_mov_b32 v{QF+r}, v{QF+4+r}")
    a("s_branch L_x1")
    a.label("L_x0")
    a(f"ds_write_b128 v16, {vr(O+16,4)}")
    a(f"ds_write_b128 v16, {vr(O+20,4)} offset:1024")
    a(f"ds_write_b32 v17, v{O+24} offset:2048")
    a.label("L_x1")
    a("s_waitcnt lgkmcnt(0)")
    a("s_barrier")
    a("v_xor_b32 v16, 0x4000, v16")
    a("v_xor_b32 v17, 0x4000, v17")
    a(f"ds_read_b128 {vr(X,4)}, v16")
    a(f"ds_read_b128 {vr(X+4,4)}, v16 offset:1024")
    a(f"ds_read_b32 v{X+8}, v17 offset:2048")
    a(f"s_lshl_b32 s{T1}, s{WV}, 16")
    a(f"s_lshl_b32 s{T2}, s{WV}, 13")
    for n in range(8):
        a(f"s_add_u32 m0, s{T2}, {n*1024}")
        a(f"s_add_u32 s{T0}, s{T1}, {n*8192}")
        a(f"buffer_load_dwordx4 v{WDO}, s[{S_B}:{S_B+3}], s{T0} offen lds")
    a("s_waitcnt lgkmcnt(0)")
    for r in range(9): a(f"v_add_f32 v{O+r}, v{O+r}, v{X+r}")
    a(f"v_max3_f32 v5, |v{O}|, |v{O+1}|, |v{O+2}|")
    a(f"v_max3_f32 v5, |v{O+3}|, |v{O+4}|, v5")
    a(f"v_max3_f32 v5, |v{O+5}|, |v{O+6}|, v5")
    a(f"v_max_f32 v5, |v{O+7}|, v5")
    a(f"s_mov_b32 s{T0}, 0x1f800000")
    a(f"s_mov_b32 s{T1}, 0x5f800000")
    a(f"s_mov_b32 s{T2}, 0x7f000000")
    a(f"v_cmp_nlt_f32 s[{T4}:{T5}], s{T0}, v{O+8}")
    a(f"v_cmp_ngt_f32 vcc, s{T1}, v{O+8}")
    a(f"s_or_b64 s[{T4}:{T5}], s[{T4}:{T5}], vcc")
    a(f"v_cmp_ngt_f32 vcc, s{T2}, v5")
    a(f"s_or_b64 s[{T4}:{T5}], s[{T4}:{T5}], vcc")
    a("s_cbranch_scc1 L_fb")
    a.label("L_fin")
    a(f"v_rcp_f32 v5, v{O+8}")
    a("s_nop 0")
    a(f"v_mul_f32 v5, v5, v{GA}")
    for r in range(8): a(f"v_mul_f32 v{O+r}, v{O+r}, v5")
    for r in range(4): a(f"v_cvt_pk_bf16_f32 v{X+r}, v{O+2*r}, v{O+2*r+1}")
    a(f"s_lshl_b32 s{T0}, s{RB}, 2")
    a(f"s_add_u32 s{T0}, s{T0}, s{CP}")
    a(f"s_mul_i32 s{T0}, s{T0}, 144")
    a(f"s_lshl_b32 s{T1}, s{CB}, 1")
    a(f"s_add_u32 s{T1}, s{T1}, s{TP}")
    a(f"s_add_u32 s{T0}, s{T0}, s{T1}")
    a(f"s_add_u32 s{T0}, s{T0}, 112")
    a(f"s_lshl_b32 s{T0}, s{T0}, 10")
    a(f"buffer_store_dwordx4 {vr(X,4)}, v2, s[{S_WS}:{S_WS+3}], s{T0} offen sc1")
    a("s_waitcnt vmcnt(9)")
    for s in range(2):
        for i in range(2):
            for j in range(2): gm(s, i, j)
    a(f"s_lshl_b32 s{T0}, s{RB}, 2")
    a(f"s_add_u32 s{T0}, s{T0}, s{CP}")
    a(f"s_lshl_b32 s{T0}, s{T0}, 5")
    a(f"s_add_u32 s{T0}, s{T0}, s{T1}")
    a(f"s_lshl_b32 s{T0}, s{T0}, 2")
    a(f"s_add_u32 s{T0}, s{T0}, {WS_FO}")
    a("v_mov_b32 v6, 0")
    a("v_mov_b32 v7, 1")
    a("s_waitcnt vmcnt(0)")
    a(f"buffer_store_dword v7, v6, s[{S_WS}:{S_WS+3}], s{T0} offen sc1")
    a(f"v_sub_f32 v{GD0}, 1.0, v{GD0}")
    a(f"v_sub_f32 v{GD1}, 1.0, v{GD1}")
    a("s_nop 7")
    for i in range(64): a(f"v_mul_f32 v{DA+i}, v{DA+i}, v{GD0 + i//32}")
    a(f"s_lshl_b32 s{T0}, s{WV}, 13")
    a(f"s_add_u32 s{T0}, s{T0}, {KVA}")
    a(f"v_add_u32 v17, s{T0}, v2")
    for pq in range(4):
        if pq < 3:
            a(f"s_cmp_lg_u32 s{CP}, {pq}")
            a(f"s_cbranch_scc1 L_w{pq+1}")
        for k in range(1, 4):
            d = DA + 16*(pq ^ k)
            for g in range(4):
                a(f"ds_write_b128 v{16 if k==1 else 17}, {vr(d+4*g,4)} offset:{(0 if k<3 else 4096) + g*1024}")
        for r in range(16): a(f"v_mov_b32 v{O+r}, v{DA+16*pq+r}")
        if pq < 3:
            a("s_branch L_we")
            a.label(f"L_w{pq+1}")
    a.label("L_we")
    a("s_waitcnt lgkmcnt(0)")
    a("s_barrier")
    a("v_xor_b32 v16, 0x1000, v16")
    a(f"s_xor_b32 s{T0}, s{WV}, 2")
    a(f"s_lshl_b32 s{T0}, s{T0}, 13")
    a(f"s_add_u32 s{T0}, s{T0}, {KVA}")
    a(f"v_add_u32 v17, s{T0}, v2")
    a(f"s_xor_b32 s{T0}, s{WV}, 3")
    a(f"s_lshl_b32 s{T0}, s{T0}, 13")
    a(f"s_add_u32 s{T0}, s{T0}, {KVA+4096}")
    a(f"v_add_u32 v5, s{T0}, v2")
    for k, ar in enumerate((16, 17, 5)):
        for g in range(4):
            a(f"ds_read_b128 {vr(X+16*k if k<2 else KF,1) if False else vr((X+16*k if k<2 else 96)+4*g,4)}, v{ar} offset:{g*1024}")
    a(f"s_and_b32 s{T0}, s{CP}, 1")
    a(f"s_lshl_b32 s{T0}, s{T0}, 6")
    a(f"v_xor_b32 v6, s{T0}, v25")
    a(f"s_lshl_b32 s{T0}, s{TP}, 15")
    a(f"v_add_u32 v6, s{T0}, v6")
    for k in range(3):
        a(f"s_waitcnt lgkmcnt({8-4*k})")
        src = X+16*k if k < 2 else 96
        for r in range(16): a(f"v_add_f32 v{O+r}, v{O+r}, v{src+r}")
    for s in range(16):
        for r in range(2):
            a(f"ds_read_b64_tr_b16 {vr(DA+4*s+2*r,2)}, v6 offset:{s*2048 + r*1024}")
    a(f"s_lshl_b32 s{T5}, s{TB}, 8")
    a(f"s_add_u32 s{T5}, s{T5}, {WS_FO}")
    poll(a, "L_op", FLG, L4, S_WS, f"s{T5}", False)
    stamp(a, 6) if False else None
    a(f"s_lshl_b32 s{T0}, s{TB}, 1")
    a(f"s_lshr_b32 s{T1}, s{CP}, 1")
    a(f"s_add_u32 s{T0}, s{T0}, s{T1}")
    a(f"s_mul_i32 s{T0}, s{T0}, 144")
    a(f"s_lshl_b32 s{T1}, s{TP}, 4")
    a(f"s_add_u32 s{T0}, s{T0}, s{T1}")
    a(f"s_add_u32 s{T0}, s{T0}, 112")
    a(f"s_lshl_b32 s{T0}, s{T0}, 10")
    for s in range(16):
        if s and s % 4 == 0: a(f"s_add_u32 s{T0}, s{T0}, 4096")
        a(f"buffer_load_dwordx4 {vr(192+4*s,4)}, v2, s[{S_WS}:{S_WS+3}], s{T0} offen offset:{(s%4)*1024} sc1")
    a("s_waitcnt lgkmcnt(0)")
    for s in range(16):
        a(f"s_waitcnt vmcnt({15-s})")
        a(f"v_mfma_f32_32x32x16_bf16 {vr(O,16)}, {vr(DA+4*s,4)}, {vr(192+4*s,4)}, {vr(O,16)}")
    a("v_and_b32 v5, 31, v0")
    a("v_lshrrev_b32 v6, 5, v0")
    a("v_and_b32 v7, 15, v0")
    a("v_xor_b32 v6, v6, v7")
    a("v_lshlrev_b32 v6, 4, v6")
    a("v_lshl_add_u32 v6, v5, 8, v6")
    a(f"s_and_b32 s{T0}, s{CP}, 1")
    a(f"s_lshl_b32 s{T0}, s{T0}, 7")
    a(f"v_xor_b32 v6, s{T0}, v6")
    a(f"s_lshr_b32 s{T0}, s{WV}, 1")
    a(f"s_lshl_b32 s{T0}, s{T0}, 13")
    a(f"s_add_u32 s{T0}, s{T0}, {KVA}")
    a(f"v_add_u32 v6, s{T0}, v6")
    for g in range(1, 4): a(f"v_xor_b32 v{8+g}, {32*g}, v6")
    a("s_barrier")
    a("s_nop 7")
    for g in range(4):
        a(f"ds_write_b128 v{6 if g==0 else 8+g}, {vr(O+4*g,4)}")
    a("v_lshrrev_b32 v5, 3, v0")
    a(f"s_lshl_b32 s{T0}, s{WV}, 3")
    a(f"v_add_u32 v5, s{T0}, v5")
    a("v_and_b32 v6, 7, v0")
    a("v_lshlrev_b32 v8, 4, v6")
    a("v_lshlrev_b32 v6, 1, v6")
    a("v_and_b32 v7, 15, v5")
    a("v_xor_b32 v6, v6, v7")
    a("v_lshlrev_b32 v6, 4, v6")
    a("v_lshl_add_u32 v6, v5, 8, v6")
    a(f"v_add_u32 v6, {KVA}, v6")
    a("v_xor_b32 v7, 16, v6")
    a("s_waitcnt lgkmcnt(0)")
    a("s_barrier")
    a(f"ds_read_b128 {vr(X,4)}, v6")
    a(f"ds_read_b128 {vr(X+4,4)}, v7")
    a(f"ds_read_b128 {vr(X+8,4)}, v6 offset:16384")
    a(f"ds_read_b128 {vr(X+12,4)}, v7 offset:16384")
    a("v_lshl_add_u32 v8, v5, 10, v8")
    a(f"s_lshl_b32 s{T0}, s{TB}, 16")
    a(f"s_lshl_b32 s{T1}, s{NB}, 7")
    a(f"s_add_u32 s{T0}, s{T0}, s{T1}")
    a("s_waitcnt lgkmcnt(0)")
    for r in range(8): a(f"v_add_f32 v{X+r}, v{X+r}, v{X+8+r}")
    for r in range(4): a(f"v_cvt_pk_bf16_f32 v{Y+r}, v{X+2*r}, v{X+2*r+1}")
    a(f"buffer_store_dwordx4 {vr(Y,4)}, v8, s[{S_C}:{S_C+3}], s{T0} offen")
    if asmlib.STAMP: a("s_waitcnt vmcnt(0)")
    stamp(a, 6); stamp_real(a, 7)
    stamp_dump(a, 0, P_WS, WV, 4)
    a.label("L_end")
    a("s_endpgm")

    NM = 224
    a.label("L_fb")
    a("v_mov_b32 v5, 0xff800000")
    a(f"s_mov_b32 s{T0}, {WS_KV}")
    a.label("L_fb1")
    a(f"buffer_load_dwordx4 {vr(KF,4)}, v2, s[{S_WS}:{S_WS+3}], s{T0} offen sc1")
    a("s_waitcnt vmcnt(0)")
    a(f"v_mfma_f32_32x32x16_bf16 {vr(X,16)}, {vr(KF,4)}, {vr(QF,4)}, 0")
    a("s_nop 15")
    for r in range(8): a(f"v_max3_f32 v5, v{X+2*r}, v{X+2*r+1}, v5")
    a(f"s_add_u32 s{T0}, s{T0}, 2048")
    a(f"s_cmp_lg_u32 s{T0}, {WS_KV + 131072}")
    a("s_cbranch_scc1 L_fb1")
    a("v_mov_b32 v6, v5")
    a("s_nop 1")
    a("v_permlane32_swap_b32 v5, v6")
    a("s_nop 1")
    a("v_max_f32 v5, v5, v6")
    for i in range(16): a(f"v_sub_f32 v{NM+i}, 0, v5")
    for i in range(16): a(f"v_mov_b32 v{O+i}, 0")
    a("v_and_b32 v6, 15, v0")
    a("v_lshlrev_b32 v6, 4, v6")
    a("v_lshrrev_b32 v7, 5, v0")
    a("v_lshl_add_u32 v6, v7, 8, v6")
    a(f"s_mov_b32 s{T0}, {WS_KV}")
    a.label("L_fb2")
    a(f"buffer_load_dwordx4 {vr(KF,4)}, v2, s[{S_WS}:{S_WS+3}], s{T0} offen sc1")
    a(f"s_mov_b64 exec, s[{VM0}:{VM1}]")
    a(f"buffer_load_dwordx4 {vr(VF,4)}, v6, s[{S_WS}:{S_WS+3}], s{T0} offen offset:1024 sc1")
    a(f"buffer_load_dwordx4 {vr(VF+4,4)}, v6, s[{S_WS}:{S_WS+3}], s{T0} offen offset:1536 sc1")
    a("s_mov_b64 exec, -1")
    a("s_waitcnt vmcnt(0)")
    a(f"v_mfma_f32_32x32x16_bf16 {vr(X,16)}, {vr(KF,4)}, {vr(QF,4)}, {vr(NM,16)}")
    a("s_nop 15")
    for r in range(16): a(f"v_exp_f32 v{X+r}, v{X+r}")
    a("s_nop 1")
    a(f"v_smfmac_f32_32x32x32_bf16 {vr(O,16)}, {vr(VF,4)}, {vr(X,8)}, v{IDX}")
    a(f"v_smfmac_f32_32x32x32_bf16 {vr(O,16)}, {vr(VF+4,4)}, {vr(X+8,8)}, v{IDX}")
    a("s_nop 15")
    a(f"s_add_u32 s{T0}, s{T0}, 2048")
    a(f"s_cmp_lg_u32 s{T0}, {WS_KV + 131072}")
    a("s_cbranch_scc1 L_fb2")
    a("s_branch L_fin")

def main(out):
    a = Asm()
    gen(a)
    kernel_desc(a, NAME, 256)
    hdr = "; @launch grid=(256,1,1) block=(512,1,1) lds=163840\n"
    hdr += '.amdgcn_target "amdgcn-amd-amdhsa--gfx950"\n'
    open(out, "w").write(hdr + a.text())

if __name__ == "__main__":
    if len(sys.argv) > 2 and sys.argv[2] == "stamp": asmlib.STAMP = True
    main(sys.argv[1])
```

```python
import sys, struct, os
import asmlib
from asmlib import *

def f32hex(x): return "0x%08x" % struct.unpack("<I", struct.pack("<f", x))[0]
LOG2E = 1.4426950408889634
NAME = "gated_mix__grouped_kv_mqa__glu_gated_glu__prompt_kernel"
WS_HO = 0
WS_KV = 0x900000
WS_G  = 0x920000
WS_FH = 0x922000
WS_FO = 0x924000
WS_SZ = 0x926000
ROT = int(os.environ.get("ROT", 1))
SPIN = 1 << 20
STN = os.environ.get("STAMPS", "c0,p1end,p2start,loopend").split(",")
def stm(a, name):
    if asmlib.STAMP and name in STN: stamp(a, 2 + STN.index(name))

S_X, S_WS, S_A, S_B, S_C, S_DBG = 4, 8, 12, 16, 20, 24
RB, CB, ROTS, II, WV = 28, 29, 30, 31, 32
TP, CP = 33, 34
TB = 35
P_X, P_WQ, P_WK, P_WV, P_WO, P_G, P_U, P_D, P_GW, P_OUT, P_DBG, P_WS = 36, 38, 40, 42, 44, 48, 50, 52, 54, 56, 58, 60
T0, T1, T2, T3, T4, T5 = 62, 63, 64, 65, 66, 67
XSO, WLD, CNT, NB = 68, 69, 70, 71
VM0, VM1 = 72, 73
HSO, WSO = 74, 75

STG = 49152
RING = 65536
KVA, KVBB = 98304, 0

def poll(a, lbl, vdst, vaddr, srd_, soff, first_issued):
    a(f"s_mov_b32 s{CNT}, {SPIN}")
    if first_issued: a(f"s_branch {lbl}_chk")
    a.label(lbl)
    a(f"buffer_load_dword v{vdst}, v{vaddr}, s[{srd_}:{srd_+3}], {soff} offen sc1")
    a("s_waitcnt vmcnt(0)")
    a.label(f"{lbl}_chk")
    a(f"v_cmp_ne_u32 vcc, 0, v{vdst}")
    a("s_cmp_eq_u64 vcc, -1")
    a(f"s_cbranch_scc1 {lbl}_ok")
    a("s_sleep 1")
    a(f"s_sub_u32 s{CNT}, s{CNT}, 1")
    a(f"s_cmp_lg_u32 s{CNT}, 0")
    a(f"s_cbranch_scc1 {lbl}")
    a.label(f"{lbl}_ok")

def gen(a):
    kernel_head(a, NAME)
    a("s_cmp_ge_u32 s2, 256")
    a("s_cbranch_scc1 L_end")
    stamp_real(a, 0); stamp(a, 1)
    a("s_load_dwordx16 s[36:51], s[0:1], 0")
    a("s_load_dwordx8 s[52:59], s[0:1], 64")
    a("s_load_dwordx2 s[60:61], s[0:1], 96")
    a("v_lshrrev_b32 v1, 6, v0")
    a("v_and_b32 v0, 63, v0")
    a("s_and_b32 s3, s2, 7")
    a(f"v_readfirstlane_b32 s{WV}, v1")
    a(f"s_lshr_b32 s{II}, s2, 3")
    a(f"s_and_b32 s{RB}, s3, 1")
    a(f"s_lshl_b32 s{RB}, s{RB}, 3")
    a(f"s_and_b32 s{T0}, s{II}, 7")
    a(f"s_add_u32 s{RB}, s{RB}, s{T0}")
    a(f"s_lshr_b32 s{CB}, s3, 1")
    a(f"s_lshl_b32 s{CB}, s{CB}, 2")
    a(f"s_lshr_b32 s{T1}, s{II}, 3")
    a(f"s_add_u32 s{CB}, s{CB}, s{T1}")
    if ROT:
        a(f"s_lshl_b32 s{T1}, s{T1}, 1")
        a(f"s_add_u32 s{ROTS}, s{T0}, s{T1}")
    else:
        a(f"s_mov_b32 s{ROTS}, 0")
    a(f"s_lshr_b32 s{TP}, s{WV}, 2")
    a(f"s_and_b32 s{CP}, s{WV}, 3")
    a("v_lshlrev_b32 v2, 4, v0")
    a("v_lshrrev_b32 v4, 4, v0")
    a(f"s_and_b32 s{T0}, s{WV}, 1")
    a(f"s_lshl_b32 s{T0}, s{T0}, 2")
    a(f"v_add_u32 v5, s{T0}, v4")
    a("v_and_b32 v6, 7, v0")
    a("v_xor_b32 v5, v5, v6")
    a("v_lshlrev_b32 v5, 4, v5")
    a("v_lshrrev_b32 v6, 3, v0")
    a("v_lshl_add_u32 v3, v6, 10, v5")
    a(f"s_lshl_b32 s{XSO}, s{RB}, 17")
    a(f"s_lshl_b32 s{T0}, s{WV}, 13")
    a(f"s_add_u32 s{XSO}, s{XSO}, s{T0}")
    a(f"s_lshl_b32 s{WLD}, s{WV}, 10")
    a("v_bfe_u32 v5, v0, 1, 3")
    a("v_lshlrev_b32 v6, 1, v4")
    a("v_xor_b32 v5, v5, v6")
    a(f"s_lshl_b32 s{T0}, s{WV}, 2")
    a(f"v_add_u32 v6, s{T0}, v4")
    a("v_and_b32 v7, 1, v0")
    a("v_lshlrev_b32 v7, 4, v7")
    a(f"s_mul_i32 s{T0}, s{CB}, 224")
    a(f"s_lshl_b32 s{T1}, s{CB}, 6")
    a("v_mul_u32_u24 v8, 3584, v6")
    a("v_add_u32 v8, v8, v7")
    a(f"v_add_u32 v8, s{T0}, v8")
    a("v_lshl_add_u32 v9, v6, 10, v7")
    a(f"v_add_u32 v9, s{T1}, v9")
    a("s_waitcnt lgkmcnt(0)")
    srd(a, S_X, P_X, 2097152)
    for half in range(2):
        pg = P_G if half == 0 else P_U
        if half: a("v_xor_b32 v5, 1, v5")
        a("v_lshl_add_u32 v16, v5, 5, v8")
        if half: a("v_add_u32 v9, 32, v9")
        a("v_cmp_eq_u32 vcc, 7, v5")
        a(f"v_mov_b32 v17, s{pg}")
        a(f"v_mov_b32 v18, s{P_WQ}")
        a("v_cndmask_b32 v16, v16, v9, vcc")
        a("v_cndmask_b32 v17, v17, v18, vcc")
        a(f"v_mov_b32 v18, s{pg+1}")
        a(f"v_mov_b32 v19, s{P_WQ+1}")
        a("v_cndmask_b32 v18, v18, v19, vcc")
        a(f"v_mov_b32 v{14+half}, {3584*32}")
        a(f"v_mov_b32 v19, {1024*32}")
        a(f"v_cndmask_b32 v{14+half}, v{14+half}, v19, vcc")
        a(f"v_add_co_u32 v{10+2*half}, vcc, v16, v17")
        a("s_nop 1")
        a(f"v_addc_co_u32 v{11+2*half}, vcc, 0, v18, vcc")

    def dma_chunk(c):
        st = c % 3
        a(f"s_add_u32 s{T0}, s{ROTS}, {c}")
        a(f"s_and_b32 s{T0}, s{T0}, 7")
        a(f"s_lshl_b32 s{T1}, s{T0}, 7")
        a(f"s_add_u32 s{T1}, s{T1}, s{XSO}")
        a(f"s_lshl_b32 s{T0}, s{T0}, 1")
        a(f"s_add_u32 s{T2}, s{T0}, 1")
        for n in range(2):
            a(f"s_add_u32 m0, s{WLD}, {st*STG + n*8192}")
            if n: a(f"s_add_u32 s{T1}, s{T1}, 65536")
            else: a("s_nop 0")
            a.vmem(f"buffer_load_dwordx4 v3, s[{S_X}:{S_X+3}], s{T1} offen lds", f"c{c}")
        for half in range(2):
            for n in range(2):
                a(f"s_add_u32 m0, s{WLD}, {st*STG + 16384 + half*16384 + n*8192}")
                a(f"v_mad_u64_u32 v[16:17], s[{T4}:{T5}], v{14+half}, s{T0 if n==0 else T2}, v[{10+2*half}:{11+2*half}]")
                a.vmem("global_load_lds_dwordx4 v[16:17], off", f"c{c}")

    srd(a, S_WS, P_WS, WS_SZ)
    srd(a, S_DBG, P_DBG, 256)
    PSC = 2*STG
    PST = 4608
    a(f"s_cmp_ge_u32 s{II}, 8")
    a("s_cbranch_scc1 L_np0")
    srd(a, S_A, P_WK, 16384)
    srd(a, S_B, P_WV, 16384)
    srd(a, S_C, P_GW, 1024)
    a(f"s_lshl_b32 s{TB}, s{RB}, 2")
    a(f"s_lshr_b32 s{T0}, s{CB}, 2")
    a(f"s_add_u32 s{TB}, s{TB}, s{T0}")
    a("v_and_b32 v5, 31, v0")
    a("v_lshrrev_b32 v6, 5, v0")
    a("v_lshlrev_b32 v6, 6, v6")
    a("v_lshl_add_u32 v5, v5, 10, v6")
    a(f"s_lshl_b32 s{T0}, s{TB}, 15")
    a(f"s_lshl_b32 s{T1}, s{WV}, 7")
    a(f"s_add_u32 s{T0}, s{T0}, s{T1}")
    for j in range(4):
        a(f"buffer_load_dwordx4 {vr(32+4*j,4)}, v5, s[{S_X}:{S_X+3}], s{T0} offen offset:{16*j}")
    a(f"s_mul_i32 s{T2}, s{WV}, {PST}")
    a(f"s_add_u32 s{T2}, s{T2}, {PSC}")
    a(f"s_lshl_b32 s{T3}, s{WV}, 11")
    for m, sd in enumerate((S_A, S_B)):
        a(f"s_add_u32 m0, s{T2}, {m*2176}")
        a("s_nop 0")
        a(f"buffer_load_dwordx4 v2, s[{sd}:{sd+3}], s{T3} offen lds")
        a(f"buffer_load_dwordx4 v2, s[{sd}:{sd+3}], s{T3} offen offset:1024 lds")
    for j in range(4):
        a(f"buffer_load_dwordx4 {vr(48+4*j,4)}, v6, s[{S_C}:{S_C+3}], s{T1} offen offset:{16*j}")
    a.label("L_np0")
    dma_chunk(0); dma_chunk(1)
    a("v_and_b32 v5, 31, v0")
    a("v_bfe_u32 v6, v0, 1, 3")
    a("v_lshrrev_b32 v7, 5, v0")
    a("v_xor_b32 v6, v6, v7")
    a("v_lshlrev_b32 v6, 4, v6")
    a("v_lshl_add_u32 v20, v5, 7, v6")
    a(f"s_lshl_b32 s{T0}, s{TP}, 13")
    a(f"v_add_u32 v20, s{T0}, v20")
    a("v_xor_b32 v21, 32, v20")
    a("v_xor_b32 v22, 64, v20")
    a("v_xor_b32 v23, 0x60, v20")
    for k in range(4): a(f"v_add_u32 v{24+k}, {2*STG}, v{20+k}")
    a("v_and_b32 v5, 1, v4")
    a("v_bfe_u32 v6, v0, 2, 2")
    a("v_lshl_add_u32 v19, v7, 3, v6")
    a("v_lshl_add_u32 v8, v6, 1, v5")
    a(f"s_lshl_b32 s{T0}, s{CP}, 1")
    a(f"v_xor_b32 v8, s{T0}, v8")
    a("v_lshlrev_b32 v8, 5, v8")
    a("v_lshl_add_u32 v8, v19, 8, v8")
    a("v_lshl_add_u32 v8, v5, 14, v8")
    a("v_and_b32 v9, 3, v0")
    a("v_lshl_add_u32 v8, v9, 3, v8")
    AW = 128
    for st in range(3):
        a(f"v_add_u32 v{AW+2*st}, {st*STG + 16384}, v8")
        a(f"v_xor_b32 v{AW+1+2*st}, 32, v{AW+2*st}")
    ACC, FR = 64, 32
    a(f"s_cmp_ge_u32 s{II}, 8")
    a("s_cbranch_scc1 L_np1")
    a("v_mul_u32_u24 v5, 2176, v5")
    a("v_lshl_add_u32 v5, v7, 10, v5")
    a("v_lshl_add_u32 v5, v6, 5, v5")
    a("v_lshl_add_u32 v5, v9, 3, v5")
    a(f"s_mul_i32 s{T2}, s{WV}, {PST}")
    a(f"s_add_u32 s{T2}, s{T2}, {PSC}")
    a(f"v_add_u32 v5, s{T2}, v5")
    a("s_waitcnt vmcnt(12)")
    for j in range(4):
        for rd in range(2):
            a(f"ds_read_b64_tr_b16 {vr(96+4*j+2*rd,2)}, v5 offset:{j*256+rd*128}")
    for j in range(4):
        a(f"v_mfma_f32_32x32x16_bf16 v[80:95], {vr(48+4*j,4)}, {vr(32+4*j,4)}, {'0' if j==0 else 'v[80:95]'}")
    a("s_waitcnt lgkmcnt(0)")
    for j in range(4):
        a(f"v_mfma_f32_32x32x16_bf16 v[64:79], {vr(96+4*j,4)}, {vr(32+4*j,4)}, {'0' if j==0 else 'v[64:79]'}")
    a(f"v_add_u32 v5, s{T2}, v2")
    a("v_lshlrev_b32 v6, 2, v0")
    a(f"v_add_u32 v8, s{T2}, v6")
    a("s_nop 12")
    a("ds_write_b128 v5, v[64:67]")
    a("ds_write_b128 v5, v[68:71] offset:1024")
    for r in range(8): a(f"ds_write_b32 v8, v{72+r} offset:{2048+256*r}")
    a("ds_write_b32 v8, v80 offset:4096")
    a("s_waitcnt lgkmcnt(0)")
    a("s_barrier")
    a(f"s_cmp_ge_u32 s{WV}, 4")
    a("s_cbranch_scc1 L_np1")
    a(f"s_cmp_eq_u32 s{WV}, 3")
    a("s_cbranch_scc1 L_p3")
    a(f"s_cmp_eq_u32 s{WV}, 2")
    a("s_cbranch_scc1 L_p2")
    a(f"v_add_u32 v5, {PSC}, v2")
    a(f"v_add_u32 v6, 1024, v5")
    a(f"s_cmp_eq_u32 s{WV}, 0")
    a("s_cbranch_scc1 L_p01")
    a("v_bfe_u32 v5, v0, 3, 1")
    a("v_lshlrev_b32 v5, 2, v5")
    a("v_and_b32 v6, 3, v0")
    a("v_add_u32 v5, v5, v6")
    a("v_lshlrev_b32 v5, 8, v5")
    a("v_bfe_u32 v6, v0, 2, 1")
    a("v_lshl_add_u32 v5, v6, 7, v5")
    a("v_lshl_add_u32 v5, v4, 5, v5")
    a(f"v_add_u32 v5, {PSC+2048}, v5")
    a("v_add_u32 v6, 16, v5")
    a.label("L_p01")
    for w in range(8):
        a(f"ds_read_b128 {vr(64+8*w,4)}, v5 offset:{w*PST}")
        a(f"ds_read_b128 {vr(68+8*w,4)}, v6 offset:{w*PST}")
    for w in range(1, 8):
        a(f"s_waitcnt lgkmcnt({14-2*w})")
        for r in range(8): a(f"v_add_f32 v{64+r}, v{64+r}, v{64+8*w+r}")
    for r in range(4): a(f"v_cvt_pk_bf16_f32 v{32+r}, v{64+2*r}, v{65+2*r}")
    a(f"s_lshl_b32 s{T0}, s{TB}, 11")
    a(f"s_add_u32 s{T0}, s{T0}, s{WLD}")
    a(f"s_add_u32 s{T0}, s{T0}, {WS_KV}")
    a(f"buffer_store_dwordx4 v[32:35], v2, s[{S_WS}:{S_WS+3}], s{T0} offen sc1")
    a("s_branch L_np1")
    a.label("L_p2")
    a("v_lshlrev_b32 v6, 2, v0")
    a(f"v_add_u32 v5, {PSC+4096}, v6")
    for w in range(8): a(f"ds_read_b32 v{64+w}, v5 offset:{w*PST}")
    a("s_waitcnt lgkmcnt(0)")
    for w in range(1, 8): a(f"v_add_f32 v64, v64, v{64+w}")
    a(f"v_mul_f32 v64, {f32hex(-LOG2E)}, v64")
    a("v_exp_f32 v64, v64")
    a("v_and_b32 v6, 0x7c, v6")
    a("v_add_f32 v64, 1.0, v64")
    a("v_rcp_f32 v64, v64")
    a(f"s_lshl_b32 s{T0}, s{TB}, 7")
    a(f"s_add_u32 s{T0}, s{T0}, {WS_G}")
    a(f"buffer_store_dword v64, v6, s[{S_WS}:{S_WS+3}], s{T0} offen sc1")
    a("s_branch L_np1")
    a.label("L_p3")
    a("v_lshlrev_b32 v6, 2, v0")
    a("v_mov_b32 v64, 0")
    a(f"s_lshl_b32 s{T0}, s{TB}, 8")
    a(f"s_add_u32 s{T0}, s{T0}, {WS_FH}")
    a(f"buffer_store_dword v64, v6, s[{S_WS}:{S_WS+3}], s{T0} offen sc1")
    a.label("L_np1")
    for i in range(64): a(f"v_mov_b32 v{ACC+i}, 0")

    def reads(c, ks, buf):
        st = c % 3
        b = FR + 16 * buf
        ax = (20 + ks) if st < 2 else (24 + ks)
        xo = st*STG if st < 2 else 0
        a(f"ds_read_b128 {vr(b,4)}, v{ax} offset:{xo}")
        a(f"ds_read_b64_tr_b16 {vr(b+8,2)}, v{AW+2*st} offset:{ks*4096}")
        a(f"ds_read_b64_tr_b16 {vr(b+10,2)}, v{AW+2*st} offset:{ks*4096+1024}")
        a(f"ds_read_b128 {vr(b+4,4)}, v{ax} offset:{xo + 4096}")
        a(f"ds_read_b64_tr_b16 {vr(b+12,2)}, v{AW+1+2*st} offset:{ks*4096}")
        a(f"ds_read_b64_tr_b16 {vr(b+14,2)}, v{AW+1+2*st} offset:{ks*4096+1024}")
    def mfmas(buf):
        b = FR + 16 * buf
        for i in range(2):
            for j in range(2):
                d = ACC + (i*2+j)*16
                a(f"v_mfma_f32_32x32x16_bf16 {vr(d,16)}, {vr(b+8+4*j,4)}, {vr(b+4*i,4)}, {vr(d,16)}")
    def kv_dma(lds0, n0, cnt, tag):
        for n in range(cnt):
            a(f"s_add_u32 s{T0}, s{T3}, {n0 + 8*n}")
            a(f"s_and_b32 s{T0}, s{T0}, 127")
            a(f"s_lshl_b32 s{T0}, s{T0}, 10")
            a(f"s_add_u32 m0, s{WLD}, {lds0 + n*8192}")
            a(f"s_add_u32 s{T0}, s{T0}, {WS_KV}")
            a.vmem(f"buffer_load_dwordx4 v2, s[{S_WS}:{S_WS+3}], s{T0} offen sc1 lds", tag)
    GA, GD0, GD1, FLG, L4 = 28, 29, 30, 31, 18
    a(f"v_lshlrev_b32 v{L4}, 2, v0")
    stm(a, 'c0')
    a.wait_vm("c0")
    a("s_barrier")
    reads(0, 0, 0)
    dma_chunk(2)
    buf = 0
    for c in range(8):
        for ks in range(4):
            if ks < 3:
                reads(c, ks+1, buf ^ 1)
                a("s_waitcnt lgkmcnt(6)")
            else:
                if c < 7: a.wait_vm(f"c{c+1}", " lgkmcnt(0)")
                else: a("s_waitcnt lgkmcnt(0)")
                if c == 5:
                    a(f"s_cmp_lg_u32 s{WV}, 0")
                    a("s_cbranch_scc1 L_kvp_ok")
                    poll(a, "L_kvp", FLG, L4, S_DBG, "0", True)
                a("s_barrier")
                if c < 7: reads(c+1, 0, buf ^ 1)
                if c == 0:
                    a(f"s_cmp_ge_u32 s{II}, 8")
                    a("s_cbranch_scc1 L_nf")
                    a(f"s_cmp_lg_u32 s{WV}, 0")
                    a("s_cbranch_scc1 L_nf")
                    a(f"s_lshl_b32 s{T0}, s2, 2")
                    a("v_mov_b32 v16, 0")
                    a("v_mov_b32 v17, 1")
                    a(f"buffer_store_dword v17, v16, s[{S_DBG}:{S_DBG+3}], s{T0} offen sc1")
                    a.label("L_nf")
                if c == 4:
                    a(f"s_cmp_lg_u32 s{WV}, 0")
                    a("s_cbranch_scc1 L_np4")
                    a(f"buffer_load_dword v{FLG}, v{L4}, s[{S_DBG}:{S_DBG+3}], 0 offen sc1")
                    a.label("L_np4")
                if c + 3 < 8: dma_chunk(c+3)
                if c == 5:
                    if ROT:
                        a(f"s_lshl_b32 s{T3}, s{II}, 2")
                        a(f"s_add_u32 s{T3}, s{T3}, s{WV}")
                    else:
                        a(f"s_mov_b32 s{T3}, s{WV}")
                    kv_dma(KVA, 0, 8, "kv")
                    a(f"s_and_b32 s{T0}, s{CB}, 1")
                    a(f"s_lshl_b32 s{TB}, s{RB}, 1")
                    a(f"s_add_u32 s{TB}, s{TB}, s{T0}")
                    a(f"s_lshr_b32 s{NB}, s{CB}, 1")
                    a(f"v_and_b32 v16, 0x7c, v{L4}")
                    a(f"s_lshl_b32 s{T0}, s{RB}, 9")
                    a(f"s_lshl_b32 s{T1}, s{CP}, 7")
                    a(f"s_add_u32 s{T0}, s{T0}, s{T1}")
                    a(f"s_add_u32 s{T0}, s{T0}, {WS_G}")
                    a.vmem(f"buffer_load_dword v{GA}, v16, s[{S_WS}:{S_WS+3}], s{T0} offen sc1", "kv")
                    a(f"s_lshl_b32 s{T0}, s{TB}, 8")
                    a(f"s_add_u32 s{T0}, s{T0}, {WS_G}")
                    a.vmem(f"buffer_load_dword v{GD0}, v16, s[{S_WS}:{S_WS+3}], s{T0} offen sc1", "kv")
                    a.vmem(f"buffer_load_dword v{GD1}, v16, s[{S_WS}:{S_WS+3}], s{T0} offen offset:128 sc1", "kv")
                if c == 6: kv_dma(KVBB, 64, 6, "kv")
                if c == 7: kv_dma(KVBB + 49152, 112, 2, "kv")
            mfmas(buf)
            buf ^= 1
    a("s_nop 15")
    stm(a, 'p1end')
    a(f"s_lshl_b32 s{T0}, s{RB}, 2")
    a(f"s_lshl_b32 s{T1}, s{TP}, 1")
    a(f"s_add_u32 s{T0}, s{T0}, s{T1}")
    a(f"s_mul_i32 s{T0}, s{T0}, 144")
    a(f"s_mul_i32 s{T1}, s{CB}, 7")
    a(f"s_add_u32 s{T0}, s{T0}, s{T1}")
    a(f"s_lshl_b32 s{T1}, s{CP}, 1")
    a(f"s_add_u32 s{T0}, s{T0}, s{T1}")
    a(f"s_lshl_b32 s{T0}, s{T0}, 10")
    a(f"s_add_u32 s{T1}, s{T0}, {144*1024}")
    a(f"s_mov_b32 s{T2}, {f32hex(-LOG2E)}")
    def h_tile(i, j):
        d = ACC + (i*2+j)*16
        for r in range(8): a(f"v_mul_f32 v{d+r}, s{T2}, v{d+r}")
        for r in range(8): a(f"v_exp_f32 v{d+r}, v{d+r}")
        for r in range(8): a(f"v_add_f32 v{d+r}, 1.0, v{d+r}")
        for r in range(8): a(f"v_rcp_f32 v{d+r}, v{d+r}")
        for r in range(8): a(f"v_mul_f32 v{d+r}, v{d+r}, v{d+8+r}")
        for r in range(4): a(f"v_cvt_pk_bf16_f32 v{d+8+r}, v{d+2*r}, v{d+2*r+1}")
        a(f"buffer_store_dwordx4 {vr(d+8,4)}, v2, s[{S_WS}:{S_WS+3}], s{T0+i} offen offset:{j*1024} sc1")
    a(f"s_cmp_eq_u32 s{CP}, 3")
    a("s_cbranch_scc1 L_qt")
    h_tile(0, 1); h_tile(1, 1)
    a("s_branch L_qte")
    a.label("L_qt")
    a(f"s_mov_b32 s{T3}, {f32hex(0.25*LOG2E)}")
    a(f"s_lshl_b32 s{T4}, s{TP}, 12")
    a(f"s_add_u32 s{T4}, s{T4}, {RING}")
    a(f"v_add_u32 v16, s{T4}, v2")
    for i in range(2):
        d = ACC + (i*2+1)*16
        for r in range(16): a(f"v_mul_f32 v{d+r}, s{T3}, v{d+r}")
        for r in range(8): a(f"v_cvt_pk_bf16_f32 v{32+8*i+r}, v{d+2*r}, v{d+2*r+1}")
        a(f"ds_write_b128 v16, {vr(32+8*i,4)} offset:{i*2048}")
        a(f"ds_write_b128 v16, {vr(36+8*i,4)} offset:{i*2048+1024}")
    a.label("L_qte")
    h_tile(0, 0); h_tile(1, 0)
    QF, X, Y, O, KF, VF = 4+4, 32, 48, 64, 96, 104
    DA, BF, AF = 128, 192, 208
    IDX, AK, AV, AT0, AT1, WDO = 19, 20, 21, 22, 23, 24
    stm(a, 'epi')
    a("s_waitcnt vmcnt(2) lgkmcnt(0)")
    stm(a, 'epiw')
    a("s_barrier")
    stm(a, 'epib')
    a.vm = []
    a(f"s_lshl_b32 s{T0}, s{CP}, 11")
    a(f"s_add_u32 s{T0}, s{T0}, {RING}")
    a(f"v_add_u32 v16, s{T0}, v2")
    a(f"ds_read_b128 {vr(QF,4)}, v16")
    a(f"ds_read_b128 {vr(QF+4,4)}, v16 offset:1024")
    a(f"s_cmp_eq_u32 s{TP}, 0")
    a(f"s_cselect_b32 s{T0}, {KVA}, {KVBB}")
    a(f"v_add_u32 v{AK}, s{T0}, v2")
    a(f"ds_read_b128 {vr(KF,4)}, v{AK}")
    a("v_and_b32 v16, 15, v0")
    a("v_lshlrev_b32 v16, 4, v16")
    a("v_lshrrev_b32 v17, 5, v0")
    a("v_lshl_add_u32 v16, v17, 8, v16")
    a(f"s_add_u32 s{T0}, s{T0}, 1024")
    a(f"v_add_u32 v{AV}, s{T0}, v16")
    a(f"v_mov_b32 v{IDX}, 0xdddd")
    a("v_and_b32 v16, 27, v0")
    a("v_cmp_eq_u32 vcc, 16, v16")
    a("v_mov_b32 v17, 0x3f803f80")
    a("s_nop 0")
    a(f"v_cndmask_b32 v{VF}, 0, v17, vcc")
    for i in range(1, 16): a(f"v_mov_b32 v{VF+i}, v{VF}")
    a(f"s_mov_b32 s{VM0}, 0xffff")
    a(f"s_mov_b32 s{VM1}, 0xffff")
    a(f"s_mov_b64 exec, s[{VM0}:{VM1}]")
    a(f"ds_read_b128 {vr(VF,4)}, v{AV}")
    a(f"ds_read_b128 {vr(VF+4,4)}, v{AV} offset:512")
    a("s_mov_b64 exec, -1")
    for i in range(32): a(f"v_mov_b32 v{O+i}, 0")
    for r in range(8, 16): a(f"v_mov_b32 v{Y+r}, 0")
    a("s_waitcnt lgkmcnt(0)")
    a(f"v_mfma_f32_32x32x16_bf16 {vr(X,16)}, {vr(KF,4)}, {vr(QF,4)}, 0")
    for i in range(64): a(f"v_mov_b32 v{DA+i}, 0")
    srd(a, S_A, P_D, 1835008)
    srd(a, S_B, P_WO, 524288)
    srd(a, S_C, P_OUT, 2097152)
    a("v_lshrrev_b32 v5, 3, v0")
    a("v_bfe_u32 v6, v0, 2, 1")
    a("v_bfe_u32 v7, v0, 4, 1")
    a("v_xor_b32 v6, v6, v7")
    a("v_lshlrev_b32 v6, 6, v6")
    a(f"v_lshl_add_u32 v{WDO}, v5, 10, v6")
    a("v_and_b32 v6, 3, v0")
    a(f"v_lshl_add_u32 v{WDO}, v6, 4, v{WDO}")
    a(f"s_lshl_b32 s{T0}, s{NB}, 7")
    a(f"v_add_u32 v{WDO}, s{T0}, v{WDO}")
    a("v_bfe_u32 v5, v0, 2, 2")
    a("v_lshrrev_b32 v6, 5, v0")
    a("v_lshl_add_u32 v6, v6, 2, v5")
    a("v_lshlrev_b32 v6, 7, v6")
    a("v_bfe_u32 v5, v0, 3, 1")
    a("v_lshl_add_u32 v6, v5, 6, v6")
    a("v_lshl_add_u32 v6, v7, 5, v6")
    a("v_and_b32 v5, 3, v0")
    a("v_lshl_add_u32 v25, v5, 3, v6")
    a(f"s_lshl_b32 s{XSO}, s{WV}, 12")
    a(f"s_add_u32 s{XSO}, s{XSO}, {RING}")
    a(f"v_add_u32 v{AT0}, s{XSO}, v25")
    a(f"v_xor_b32 v{AT1}, 64, v{AT0}")
    a(f"s_mul_i32 s{HSO}, s{TB}, 288")
    a(f"s_mul_i32 s{T0}, s{WV}, 14")
    a(f"s_add_u32 s{HSO}, s{HSO}, s{T0}")
    a(f"s_lshl_b32 s{HSO}, s{HSO}, 10")
    a(f"s_mul_i32 s{WSO}, s{WV}, 229376")
    stm(a, 'p2start')

    def wdma(slot):
        for n in range(2):
            a(f"s_add_u32 m0, s{XSO}, {slot*2048 + n*1024}")
            a(f"s_add_u32 s{T0}, s{WSO}, {n*8192}") if n else a("s_nop 0")
            a(f"buffer_load_dwordx4 v{WDO}, s[{S_A}:{S_A+3}], s{T0 if n else WSO} offen lds")
        a(f"s_add_u32 s{WSO}, s{WSO}, 16384")
    def bload(bufi, i, off):
        a(f"s_add_u32 s{T0}, s{HSO}, {off + i*147456}")
        a(f"buffer_load_dwordx4 {vr(BF+8*bufi+4*i,4)}, v2, s[{S_WS}:{S_WS+3}], s{T0} offen sc1")
    def trread(slot, k):
        j, r = k // 2, k % 2
        a(f"ds_read_b64_tr_b16 {vr(AF+8*slot+4*j+2*r,2)}, v{AT0+j} offset:{slot*2048 + r*1024}")
    def gm(s, i, j):
        d = DA + (i*2+j)*16
        a(f"v_mfma_f32_32x32x16_bf16 {vr(d,16)}, {vr(AF+8*s+4*j,4)}, {vr(BF+8*s+4*i,4)}, {vr(d,16)}")

    def body(gemm):
        for u in range(8):
            t, hd = u // 2, u % 2
            cur, nxt = (X, Y) if hd == 0 else (Y, X)
            p, q = u // 4, u % 4
            def ex(lo, hi):
                for r in range(lo, hi): a(f"v_exp_f32 v{cur+r}, v{cur+r}")
            ex(0, 2)
            pv = (t - 1) % 2 if hd == 0 else t % 2
            a(f"v_smfmac_f32_32x32x32_bf16 {vr(O+16*(1-hd),16)}, {vr(VF+8*pv+4,4)}, {vr(nxt+8,8)}, v{IDX}")
            if hd == 0:
                a(f"s_mov_b64 exec, s[{VM0}:{VM1}]")
                a(f"ds_read_b128 {vr(VF+8*((t+1)%2),4)}, v{AV} offset:{(t+1)*2048}")
                a(f"ds_read_b128 {vr(VF+8*((t+1)%2)+4,4)}, v{AV} offset:{(t+1)*2048+512}")
                a("s_mov_b64 exec, -1")
            else:
                a("s_waitcnt lgkmcnt(0)")
            ex(2, 6)
            kb = t % 2 if hd == 0 else (t+1) % 2
            a(f"v_mfma_f32_32x32x16_bf16 {vr(nxt,16)}, {vr(KF+4*kb,4)}, {vr(QF+4*(1-hd),4)}, 0")
            if hd == 0:
                if gemm and q == 0: a("s_waitcnt vmcnt(4)")
                a(f"ds_read_b128 {vr(KF+4*((t+1)%2),4)}, v{AK} offset:{(t+1)*2048}")
                if gemm and q == 0: trread(p, 0); trread(p, 1)
            elif gemm and q == 1: wdma(p)
            elif gemm and q == 3: a("s_waitcnt vmcnt(7)")
            ex(6, 10)
            a(f"v_smfmac_f32_32x32x32_bf16 {vr(O+16*hd,16)}, {vr(VF+8*(t%2),4)}, {vr(cur,8)}, v{IDX}")
            if gemm and q == 0: trread(p, 2); trread(p, 3)
            if not gemm: a("s_nop 0")
            if u == 7:
                a(f"s_sub_u32 s{CNT}, s{CNT}, 1")
            ex(10, 14)
            if gemm:
                if q == 0:
                    gm(1-p, 1, 1); bload(1-p, 1, (p+1)*1024)
                elif q == 1: gm(p, 0, 0)
                elif q == 2:
                    gm(p, 0, 1); bload(p, 0, (p+2)*1024)
                else: gm(p, 1, 0)
            if u == 7:
                if gemm: a(f"s_add_u32 s{HSO}, s{HSO}, 2048")
                a(f"v_add_u32 v{AK}, 8192, v{AK}")
                a(f"v_add_u32 v{AV}, 8192, v{AV}")
                a(f"s_cmp_lg_u32 s{CNT}, 0")
            ex(14, 16)

    a(f"s_mov_b32 s{CNT}, 1")
    a(f"s_mov_b32 s{T5}, 0")
    a.label("L_a0")
    body(False)
    a(f"s_cmp_lg_u32 s{T5}, 0")
    a("s_cbranch_scc1 L_a1")
    a("s_waitcnt vmcnt(0)")
    a(f"s_lshl_b32 s{T0}, s{RB}, 1")
    a(f"s_add_u32 s{T0}, s{T0}, s{TP}")
    a(f"s_lshl_b32 s{T0}, s{T0}, 6")
    a(f"s_lshl_b32 s{T1}, s{CB}, 2")
    a(f"s_add_u32 s{T0}, s{T0}, s{T1}")
    a(f"s_add_u32 s{T0}, s{T0}, s{CP}")
    a(f"s_lshl_b32 s{T0}, s{T0}, 2")
    a(f"s_add_u32 s{T0}, s{T0}, {WS_FH}")
    a("v_mov_b32 v16, 0")
    a("v_mov_b32 v17, 1")
    a(f"buffer_store_dword v17, v16, s[{S_WS}:{S_WS+3}], s{T0} offen sc1")
    a("s_barrier")
    wdma(0); wdma(1)
    a(f"s_mov_b32 s{T5}, 1")
    a("s_branch L_a0")
    a.label("L_a1")
    stm(a, 'hp0')
    a(f"s_lshl_b32 s{T5}, s{TB}, 8")
    a(f"s_add_u32 s{T5}, s{T5}, {WS_FH}")
    poll(a, "L_hp", FLG, L4, S_WS, f"s{T5}", False)
    bload(0, 0, 0); bload(0, 1, 0); bload(1, 0, 1024)
    for i in range(8): a(f"v_mov_b32 v{AF+8+i}, 0")
    for i in range(4): a(f"v_mov_b32 v{BF+12+i}, 0")
    stm(a, 'hp1')
    a("s_waitcnt vmcnt(1)")
    stm(a, 'hp2')
    a(f"s_mov_b32 s{CNT}, 6")
    a.label("L_g")
    body(True)
    a("s_cbranch_scc1 L_g")
    a(f"v_smfmac_f32_32x32x32_bf16 {vr(O+16,16)}, {vr(VF+8+4,4)}, {vr(Y+8,8)}, v{IDX}") if False else None
    a("s_nop 0")
    a(f"v_smfmac_f32_32x32x32_bf16 {vr(O+16,16)}, {vr(VF+8+4,4)}, {vr(Y+8,8)}, v{IDX}")
    gm(1, 1, 1)
    a("s_waitcnt vmcnt(1)")
    bload(1, 1, 1024)
    for k in range(4): trread(0, k)
    for k in range(4): trread(1, k)
    stm(a, 'loopend')
    a("s_waitcnt lgkmcnt(0)")
    a("s_nop 7")
    a(f"v_add_u32 v16, s{XSO}, v2")
    a(f"v_add_u32 v17, s{XSO}, v{L4}")
    a(f"s_cmp_eq_u32 s{TP}, 0")
    a("s_cbranch_scc1 L_x0")
    a(f"ds_write_b128 v16, {vr(O,4)}")
    a(f"ds_write_b128 v16, {vr(O+4,4)} offset:1024")
    a(f"ds_write_b32 v17, v{O+8} offset:2048")
    for r in range(9): a(f"v_mov_b32 v{O+r}, v{O+16+r}")
    for r in range(4): a(f"v_mov_b32 v{QF+r}, v{QF+4+r}")
    a("s_branch L_x1")
    a.label("L_x0")
    a(f"ds_write_b128 v16, {vr(O+16,4)}")
    a(f"ds_write_b128 v16, {vr(O+20,4)} offset:1024")
    a(f"ds_write_b32 v17, v{O+24} offset:2048")
    a.label("L_x1")
    a("s_waitcnt lgkmcnt(0)")
    a("s_barrier")
    stm(a, 'b1')
    a("v_xor_b32 v16, 0x4000, v16")
    a("v_xor_b32 v17, 0x4000, v17")
    a(f"ds_read_b128 {vr(X,4)}, v16")
    a(f"ds_read_b128 {vr(X+4,4)}, v16 offset:1024")
    a(f"ds_read_b32 v{X+8}, v17 offset:2048")
    a(f"s_lshl_b32 s{T1}, s{WV}, 16")
    a(f"s_lshl_b32 s{T2}, s{WV}, 13")
    for n in range(8):
        a(f"s_add_u32 m0, s{T2}, {n*1024}")
        a(f"s_add_u32 s{T0}, s{T1}, {n*8192}")
        a(f"buffer_load_dwordx4 v{WDO}, s[{S_B}:{S_B+3}], s{T0} offen lds")
    a("s_waitcnt lgkmcnt(0)")
    for r in range(9): a(f"v_add_f32 v{O+r}, v{O+r}, v{X+r}")
    a(f"v_max3_f32 v5, |v{O}|, |v{O+1}|, |v{O+2}|")
    a(f"v_max3_f32 v5, |v{O+3}|, |v{O+4}|, v5")
    a(f"v_max3_f32 v5, |v{O+5}|, |v{O+6}|, v5")
    a(f"v_max_f32 v5, |v{O+7}|, v5")
    a(f"s_mov_b32 s{T0}, 0x1f800000")
    a(f"s_mov_b32 s{T1}, 0x5f800000")
    a(f"s_mov_b32 s{T2}, 0x7f000000")
    a(f"v_cmp_nlt_f32 s[{T4}:{T5}], s{T0}, v{O+8}")
    a(f"v_cmp_ngt_f32 vcc, s{T1}, v{O+8}")
    a(f"s_or_b64 s[{T4}:{T5}], s[{T4}:{T5}], vcc")
    a(f"v_cmp_ngt_f32 vcc, s{T2}, v5")
    a(f"s_or_b64 s[{T4}:{T5}], s[{T4}:{T5}], vcc")
    a("s_cbranch_scc1 L_fb")
    a.label("L_fin")
    a(f"v_rcp_f32 v5, v{O+8}")
    a("s_nop 0")
    a(f"v_mul_f32 v5, v5, v{GA}")
    for r in range(8): a(f"v_mul_f32 v{O+r}, v{O+r}, v5")
    for r in range(4): a(f"v_cvt_pk_bf16_f32 v{X+r}, v{O+2*r}, v{O+2*r+1}")
    a(f"s_lshl_b32 s{T0}, s{RB}, 2")
    a(f"s_add_u32 s{T0}, s{T0}, s{CP}")
    a(f"s_mul_i32 s{T0}, s{T0}, 144")
    a(f"s_lshl_b32 s{T1}, s{CB}, 1")
    a(f"s_add_u32 s{T1}, s{T1}, s{TP}")
    a(f"s_add_u32 s{T0}, s{T0}, s{T1}")
    a(f"s_add_u32 s{T0}, s{T0}, 112")
    a(f"s_lshl_b32 s{T0}, s{T0}, 10")
    a(f"buffer_store_dwordx4 {vr(X,4)}, v2, s[{S_WS}:{S_WS+3}], s{T0} offen sc1")
    stm(a, 'ost')
    a("s_waitcnt vmcnt(9)")
    for s in range(2):
        for i in range(2):
            for j in range(2): gm(s, i, j)
    a(f"s_lshl_b32 s{T0}, s{RB}, 2")
    a(f"s_add_u32 s{T0}, s{T0}, s{CP}")
    a(f"s_lshl_b32 s{T0}, s{T0}, 5")
    a(f"s_add_u32 s{T0}, s{T0}, s{T1}")
    a(f"s_lshl_b32 s{T0}, s{T0}, 2")
    a(f"s_add_u32 s{T0}, s{T0}, {WS_FO}")
    a("v_mov_b32 v6, 0")
    a("v_mov_b32 v7, 1")
    a("s_waitcnt vmcnt(0)")
    a(f"buffer_store_dword v7, v6, s[{S_WS}:{S_WS+3}], s{T0} offen sc1")
    stm(a, 'ofl')
    a(f"v_sub_f32 v{GD0}, 1.0, v{GD0}")
    a(f"v_sub_f32 v{GD1}, 1.0, v{GD1}")
    a("s_nop 7")
    for i in range(64): a(f"v_mul_f32 v{DA+i}, v{DA+i}, v{GD0 + i//32}")
    a(f"s_lshl_b32 s{T0}, s{WV}, 13")
    a(f"s_add_u32 s{T0}, s{T0}, {KVA}")
    a(f"v_add_u32 v17, s{T0}, v2")
    for pq in range(4):
        if pq < 3:
            a(f"s_cmp_lg_u32 s{CP}, {pq}")
            a(f"s_cbranch_scc1 L_w{pq+1}")
        for k in range(1, 4):
            d = DA + 16*(pq ^ k)
            for g in range(4):
                a(f"ds_write_b128 v{16 if k==1 else 17}, {vr(d+4*g,4)} offset:{(0 if k<3 else 4096) + g*1024}")
        for r in range(16): a(f"v_mov_b32 v{O+r}, v{DA+16*pq+r}")
        if pq < 3:
            a("s_branch L_we")
            a.label(f"L_w{pq+1}")
    a.label("L_we")
    a("s_waitcnt lgkmcnt(0)")
    a("s_barrier")
    stm(a, 'b2')
    a("v_xor_b32 v16, 0x1000, v16")
    a(f"s_xor_b32 s{T0}, s{WV}, 2")
    a(f"s_lshl_b32 s{T0}, s{T0}, 13")
    a(f"s_add_u32 s{T0}, s{T0}, {KVA}")
    a(f"v_add_u32 v17, s{T0}, v2")
    a(f"s_xor_b32 s{T0}, s{WV}, 3")
    a(f"s_lshl_b32 s{T0}, s{T0}, 13")
    a(f"s_add_u32 s{T0}, s{T0}, {KVA+4096}")
    a(f"v_add_u32 v5, s{T0}, v2")
    for k, ar in enumerate((16, 17, 5)):
        for g in range(4):
            a(f"ds_read_b128 {vr(X+16*k if k<2 else KF,1) if False else vr((X+16*k if k<2 else 96)+4*g,4)}, v{ar} offset:{g*1024}")
    a(f"s_and_b32 s{T0}, s{CP}, 1")
    a(f"s_lshl_b32 s{T0}, s{T0}, 6")
    a(f"v_xor_b32 v6, s{T0}, v25")
    a(f"s_lshl_b32 s{T0}, s{TP}, 15")
    a(f"v_add_u32 v6, s{T0}, v6")
    for k in range(3):
        a(f"s_waitcnt lgkmcnt({8-4*k})")
        src = X+16*k if k < 2 else 96
        for r in range(16): a(f"v_add_f32 v{O+r}, v{O+r}, v{src+r}")
    for s in range(16):
        for r in range(2):
            a(f"ds_read_b64_tr_b16 {vr(DA+4*s+2*r,2)}, v6 offset:{s*2048 + r*1024}")
    a(f"s_lshl_b32 s{T5}, s{TB}, 8")
    a(f"s_add_u32 s{T5}, s{T5}, {WS_FO}")
    stm(a, 'op0')
    poll(a, "L_op", FLG, L4, S_WS, f"s{T5}", False)
    stm(a, 'op1')
    stamp(a, 6) if False else None
    a(f"s_lshl_b32 s{T0}, s{TB}, 1")
    a(f"s_lshr_b32 s{T1}, s{CP}, 1")
    a(f"s_add_u32 s{T0}, s{T0}, s{T1}")
    a(f"s_mul_i32 s{T0}, s{T0}, 144")
    a(f"s_lshl_b32 s{T1}, s{TP}, 4")
    a(f"s_add_u32 s{T0}, s{T0}, s{T1}")
    a(f"s_add_u32 s{T0}, s{T0}, 112")
    a(f"s_lshl_b32 s{T0}, s{T0}, 10")
    for s in range(16):
        if s and s % 4 == 0: a(f"s_add_u32 s{T0}, s{T0}, 4096")
        a(f"buffer_load_dwordx4 {vr(192+4*s,4)}, v2, s[{S_WS}:{S_WS+3}], s{T0} offen offset:{(s%4)*1024} sc1")
    a("s_waitcnt lgkmcnt(0)")
    for s in range(16):
        a(f"s_waitcnt vmcnt({15-s})")
        a(f"v_mfma_f32_32x32x16_bf16 {vr(O,16)}, {vr(DA+4*s,4)}, {vr(192+4*s,4)}, {vr(O,16)}")
    stm(a, 'omf')
    a("v_and_b32 v5, 31, v0")
    a("v_lshrrev_b32 v6, 5, v0")
    a("v_and_b32 v7, 15, v0")
    a("v_xor_b32 v6, v6, v7")
    a("v_lshlrev_b32 v6, 4, v6")
    a("v_lshl_add_u32 v6, v5, 8, v6")
    a(f"s_and_b32 s{T0}, s{CP}, 1")
    a(f"s_lshl_b32 s{T0}, s{T0}, 7")
    a(f"v_xor_b32 v6, s{T0}, v6")
    a(f"s_lshr_b32 s{T0}, s{WV}, 1")
    a(f"s_lshl_b32 s{T0}, s{T0}, 13")
    a(f"s_add_u32 s{T0}, s{T0}, {KVA}")
    a(f"v_add_u32 v6, s{T0}, v6")
    for g in range(1, 4): a(f"v_xor_b32 v{8+g}, {32*g}, v6")
    a("s_barrier")
    a("s_nop 7")
    for g in range(4):
        a(f"ds_write_b128 v{6 if g==0 else 8+g}, {vr(O+4*g,4)}")
    a("v_lshrrev_b32 v5, 3, v0")
    a(f"s_lshl_b32 s{T0}, s{WV}, 3")
    a(f"v_add_u32 v5, s{T0}, v5")
    a("v_and_b32 v6, 7, v0")
    a("v_lshlrev_b32 v8, 4, v6")
    a("v_lshlrev_b32 v6, 1, v6")
    a("v_and_b32 v7, 15, v5")
    a("v_xor_b32 v6, v6, v7")
    a("v_lshlrev_b32 v6, 4, v6")
    a("v_lshl_add_u32 v6, v5, 8, v6")
    a(f"v_add_u32 v6, {KVA}, v6")
    a("v_xor_b32 v7, 16, v6")
    a("s_waitcnt lgkmcnt(0)")
    a("s_barrier")
    a(f"ds_read_b128 {vr(X,4)}, v6")
    a(f"ds_read_b128 {vr(X+4,4)}, v7")
    a(f"ds_read_b128 {vr(X+8,4)}, v6 offset:16384")
    a(f"ds_read_b128 {vr(X+12,4)}, v7 offset:16384")
    a("v_lshl_add_u32 v8, v5, 10, v8")
    a(f"s_lshl_b32 s{T0}, s{TB}, 16")
    a(f"s_lshl_b32 s{T1}, s{NB}, 7")
    a(f"s_add_u32 s{T0}, s{T0}, s{T1}")
    a("s_waitcnt lgkmcnt(0)")
    for r in range(8): a(f"v_add_f32 v{X+r}, v{X+r}, v{X+8+r}")
    for r in range(4): a(f"v_cvt_pk_bf16_f32 v{Y+r}, v{X+2*r}, v{X+2*r+1}")
    a(f"buffer_store_dwordx4 {vr(Y,4)}, v8, s[{S_C}:{S_C+3}], s{T0} offen")
    if asmlib.STAMP: a("s_waitcnt vmcnt(0)")
    stamp(a, 6); stamp_real(a, 7)
    stamp_dump(a, 0, P_WS, WV, 4)
    if os.environ.get("DBGOUT"):
        a(f"s_cmp_lg_u32 s{WV}, 7")
        a("s_cbranch_scc1 L_end")
        a("s_cmp_eq_u32 s2, 3")
        a(f"s_cselect_b32 s{T0}, 0, 32")
        a("s_cselect_b32 s3, 100, s2")
        a("s_cmp_lg_u32 s3, 100")
        a("s_cbranch_scc1 L_end")
        a("v_mov_b32 v4, 0")
        for i in range(8):
            if i in (0, 7): a(f"s_sub_u32 s3, s98, s84")
            else: a(f"s_sub_u32 s3, s{84+2*i}, s86")
            a("s_or_b32 s3, s3, 0x40000000")
            a("v_mov_b32 v5, s3")
            a(f"buffer_store_dword v5, v4, s[{S_DBG}:{S_DBG+3}], s{T0} offen offset:{4*i}")
            a("s_nop 1")
    a.label("L_end")
    a("s_endpgm")

    NM = 224
    a.label("L_fb")
    a("v_mov_b32 v5, 0xff800000")
    a(f"s_mov_b32 s{T0}, {WS_KV}")
    a.label("L_fb1")
    a(f"buffer_load_dwordx4 {vr(KF,4)}, v2, s[{S_WS}:{S_WS+3}], s{T0} offen sc1")
    a("s_waitcnt vmcnt(0)")
    a(f"v_mfma_f32_32x32x16_bf16 {vr(X,16)}, {vr(KF,4)}, {vr(QF,4)}, 0")
    a("s_nop 15")
    for r in range(8): a(f"v_max3_f32 v5, v{X+2*r}, v{X+2*r+1}, v5")
    a(f"s_add_u32 s{T0}, s{T0}, 2048")
    a(f"s_cmp_lg_u32 s{T0}, {WS_KV + 131072}")
    a("s_cbranch_scc1 L_fb1")
    a("v_mov_b32 v6, v5")
    a("s_nop 1")
    a("v_permlane32_swap_b32 v5, v6")
    a("s_nop 1")
    a("v_max_f32 v5, v5, v6")
    for i in range(16): a(f"v_sub_f32 v{NM+i}, 0, v5")
    for i in range(16): a(f"v_mov_b32 v{O+i}, 0")
    a("v_and_b32 v6, 15, v0")
    a("v_lshlrev_b32 v6, 4, v6")
    a("v_lshrrev_b32 v7, 5, v0")
    a("v_lshl_add_u32 v6, v7, 8, v6")
    a(f"s_mov_b32 s{T0}, {WS_KV}")
    a.label("L_fb2")
    a(f"buffer_load_dwordx4 {vr(KF,4)}, v2, s[{S_WS}:{S_WS+3}], s{T0} offen sc1")
    a(f"s_mov_b64 exec, s[{VM0}:{VM1}]")
    a(f"buffer_load_dwordx4 {vr(VF,4)}, v6, s[{S_WS}:{S_WS+3}], s{T0} offen offset:1024 sc1")
    a(f"buffer_load_dwordx4 {vr(VF+4,4)}, v6, s[{S_WS}:{S_WS+3}], s{T0} offen offset:1536 sc1")
    a("s_mov_b64 exec, -1")
    a("s_waitcnt vmcnt(0)")
    a(f"v_mfma_f32_32x32x16_bf16 {vr(X,16)}, {vr(KF,4)}, {vr(QF,4)}, {vr(NM,16)}")
    a("s_nop 15")
    for r in range(16): a(f"v_exp_f32 v{X+r}, v{X+r}")
    a("s_nop 1")
    a(f"v_smfmac_f32_32x32x32_bf16 {vr(O,16)}, {vr(VF,4)}, {vr(X,8)}, v{IDX}")
    a(f"v_smfmac_f32_32x32x32_bf16 {vr(O,16)}, {vr(VF+4,4)}, {vr(X+8,8)}, v{IDX}")
    a("s_nop 15")
    a(f"s_add_u32 s{T0}, s{T0}, 2048")
    a(f"s_cmp_lg_u32 s{T0}, {WS_KV + 131072}")
    a("s_cbranch_scc1 L_fb2")
    a("s_branch L_fin")

def main(out):
    a = Asm()
    gen(a)
    kernel_desc(a, NAME, 256)
    hdr = "; @launch grid=(256,1,1) block=(512,1,1) lds=163840\n"
    hdr += '.amdgcn_target "amdgcn-amd-amdhsa--gfx950"\n'
    open(out, "w").write(hdr + a.text())

if __name__ == "__main__":
    if len(sys.argv) > 2 and sys.argv[2] == "stamp": asmlib.STAMP = True
    main(sys.argv[1])
```

```python
import sys, struct, os
import asmlib
from asmlib import *

def f32hex(x): return "0x%08x" % struct.unpack("<I", struct.pack("<f", x))[0]
LOG2E = 1.4426950408889634
NAME = "gated_mix__grouped_kv_mqa__glu_gated_glu__prompt_kernel"
WS_HO = 0
WS_KV = 0x900000
WS_G  = 0x920000
WS_FK = 0x922000
WS_FH = 0x924000
WS_FO = 0x92C000
WS_SZ = 0x96C000
E = lambda n, d: int(os.environ.get(n, d))
ROT = E("ROT", 1); CODEPF = E("CODEPF", 1); PRIO = E("PRIO", 0)
SPIN = 1 << 20
LOADER = E('LOADER', 1)
CHST = E('CHST', 0)
CODE_LAST = 12288
STN = os.environ.get("STAMPS", "c0,p1end,p2start,loopend").split(",")
def stm(a, name):
    if asmlib.STAMP and name in STN: stamp(a, 2 + STN.index(name))

S_X, S_WS, S_A, S_B, S_C, S_DBG = 4, 8, 12, 16, 20, 24
RB, CB, ROTS, II, WV, TP, CP, TB = 28, 29, 30, 31, 32, 33, 34, 35
P_X, P_WQ, P_WK, P_WV, P_WO, P_G, P_U, P_D, P_GW, P_OUT, P_DBG, P_WS = 36, 38, 40, 42, 44, 48, 50, 52, 54, 56, 58, 60
CH, SST = 46, 47
T0, T1, T2, T3, T4, T5 = 62, 63, 64, 65, 66, 67
XSO, WLD, CNT, NB = 68, 69, 70, 71
VM0, VM1 = 72, 73
HSO, WSO = 74, 75
HS1 = 3
HD0 = 30
RET = 20

STG = 49152
PSC = 3*STG
RING = 65536
KVA, KVBB = 98304, 0

def spin(a, lbl, vdst, vaddr, srd_, soff, wide=False, slp=4):
    a(f"s_mov_b32 s{CNT}, {SPIN}")
    a.label(lbl)
    if wide: a(f"v_min_u32 v{vdst}, v{vdst}, v{vdst+1}")
    a(f"v_cmp_ne_u32 vcc, 0, v{vdst}")
    a("s_cmp_eq_u64 vcc, -1")
    a(f"s_cbranch_scc1 {lbl}_ok")
    a(f"s_sub_u32 s{CNT}, s{CNT}, 1")
    a(f"s_cbranch_scc1 {lbl}_ok")
    a(f"s_sleep {slp}")
    pollload(a, vdst, vaddr, srd_, soff, wide)
    a("s_waitcnt vmcnt(0)")
    a(f"s_branch {lbl}")
    a.label(f"{lbl}_ok")
def pollload(a, vdst, vaddr, srd_, soff, wide=False):
    if wide: a(f"buffer_load_dwordx2 {vr(vdst,2)}, v{vaddr}, s[{srd_}:{srd_+3}], {soff} offen sc1")
    else: a(f"buffer_load_dword v{vdst}, v{vaddr}, s[{srd_}:{srd_+3}], {soff} offen sc1")

def gen(a):
    kernel_head(a, NAME)
    a.label("L_start")
    a("s_cmp_ge_u32 s2, 256")
    a("s_cbranch_scc1 L_end")
    stamp_real(a, 0); stamp(a, 1)
    a("s_load_dwordx16 s[36:51], s[0:1], 0")
    a("s_load_dwordx8 s[52:59], s[0:1], 64")
    a("s_load_dwordx2 s[60:61], s[0:1], 96")
    a("v_lshrrev_b32 v1, 6, v0")
    a("v_and_b32 v0, 63, v0")
    a("s_and_b32 s3, s2, 7")
    a(f"v_readfirstlane_b32 s{WV}, v1")
    a(f"s_lshr_b32 s{II}, s2, 3")
    a(f"s_and_b32 s{RB}, s3, 1")
    a(f"s_lshl_b32 s{RB}, s{RB}, 3")
    a(f"s_and_b32 s{T0}, s{II}, 7")
    a(f"s_add_u32 s{RB}, s{RB}, s{T0}")
    a(f"s_lshr_b32 s{CB}, s3, 1")
    a(f"s_lshl_b32 s{CB}, s{CB}, 2")
    a(f"s_lshr_b32 s{T1}, s{II}, 3")
    a(f"s_add_u32 s{CB}, s{CB}, s{T1}")
    if ROT:
        a(f"s_lshl_b32 s{T1}, s{T1}, 1")
        a(f"s_add_u32 s{ROTS}, s{T0}, s{T1}")
    else:
        a(f"s_mov_b32 s{ROTS}, 0")
    a(f"s_lshr_b32 s{TP}, s{WV}, 2")
    a(f"s_and_b32 s{CP}, s{WV}, 3")
    L4, FLG = 18, 30
    a("v_lshlrev_b32 v2, 4, v0")
    a("v_lshrrev_b32 v4, 4, v0")
    a("v_lshrrev_b32 v7, 5, v0")
    a("v_and_b32 v14, 1, v4")
    a(f"v_lshlrev_b32 v{L4}, 2, v0")
    a("v_lshlrev_b32 v29, 7, v0")
    a(f"s_lshl_b32 s{WLD}, s{CP}, 10")
    a(f"s_cmp_eq_u32 s{TP}, {LOADER}")
    a("s_cbranch_scc0 L_comp")
    a("s_setprio 3")
    a("v_and_b32 v5, 7, v0")
    a("v_xor_b32 v5, v5, v4")
    a("v_lshlrev_b32 v5, 4, v5")
    a("v_lshrrev_b32 v8, 3, v0")
    a("v_lshl_add_u32 v3, v8, 10, v5")
    a("v_xor_b32 v15, 64, v3")
    a("v_add_u32 v15, 0x2000, v15")
    a(f"s_lshl_b32 s{XSO}, s{RB}, 17")
    a(f"s_lshl_b32 s{T2}, s{CP}, 15")
    a(f"s_add_u32 s{XSO}, s{XSO}, s{T2}")
    a(f"s_lshl_b32 s{NB}, s{CP}, 12")
    a(f"s_lshl_b32 s{T1}, s{CB}, 8")
    a("v_bfe_u32 v5, v0, 1, 3")
    a("v_lshlrev_b32 v6, 1, v4")
    a("v_xor_b32 v5, v5, v6")
    a("v_lshlrev_b32 v5, 5, v5")
    a("v_and_b32 v6, 1, v0")
    a("v_lshl_add_u32 v5, v6, 4, v5")
    a(f"s_lshl_b32 s{T0}, s{CP}, 2")
    a(f"v_add_u32 v6, s{T0}, v4")
    a("v_mul_u32_u24 v6, 3584, v6")
    a(f"v_add3_u32 v10, v5, v6, s{T1}")
    a("v_xor_b32 v11, 32, v10")
    a("v_lshrrev_b32 v5, 2, v0")
    a("v_and_b32 v6, 3, v0")
    a("v_lshlrev_b32 v6, 4, v6")
    a("v_lshl_add_u32 v12, v5, 10, v6")
    a(f"s_lshl_b32 s{T0}, s{CP}, 14")
    a(f"s_lshl_b32 s{T1}, s{CB}, 6")
    a(f"s_add_u32 s{T0}, s{T0}, s{T1}")
    a(f"v_add_u32 v12, s{T0}, v12")
    a(f"s_add_u32 s{WSO}, s{WLD}, {PSC}")
    a("v_mov_b32 v8, 0")
    a("s_waitcnt lgkmcnt(0)")
    a(f"s_mov_b32 s{CH}, s{ROTS}")
    a(f"s_mov_b32 s{SST}, 0")
    stm(a, 'karg')
    srd(a, S_X, P_X, 2097152)
    srd(a, S_C, P_WQ, 524288)
    ST2 = 24576
    def chunk_dma(kvwg):
        a(f"s_and_b32 s{T0}, s{CH}, 7")
        a(f"s_lshl_b32 s{T1}, s{T0}, 7")
        a(f"s_add_u32 m0, s{NB}, s{SST}")
        a(f"s_add_u32 s{T1}, s{T1}, s{XSO}")
        for n in range(4):
            a(f"buffer_load_dwordx4 v{3 if n % 2 == 0 else 15}, s[{S_X}:{S_X+3}], s{T1} offen lds")
            if n < 3:
                a("s_add_u32 m0, m0, 1024")
                if n == 1: a(f"s_add_u32 s{T1}, s{T1}, 16384")
                else: a("s_nop 0")
        if kvwg:
            a(f"s_add_u32 m0, s{WLD}, s{SST}")
            a("s_add_u32 m0, m0, 16384")
            a(f"s_lshl_b32 s{T1}, s{T0}, 16")
            a(f"buffer_load_dwordx4 v12, s[{S_C}:{S_C+3}], s{T1} offen lds")
            a("s_add_u32 m0, m0, 4096")
            a(f"s_lshl_b32 s{T1}, s{T0}, 11")
            a(f"buffer_load_dwordx4 v10, s[{S_A}:{S_A+3}], s{T1} offen lds")
            a(f"s_add_u32 s{CH}, s{CH}, 1")
            a(f"s_add_u32 s{SST}, s{SST}, {ST2}")
            return
        a(f"s_mov_b32 m0, s{WSO}")
        a(f"s_lshl_b32 s{T1}, s{T0}, 16")
        a(f"buffer_load_dwordx4 v12, s[{S_C}:{S_C+3}], s{T1} offen lds")
        a(f"s_add_u32 m0, s{WLD}, s{SST}")
        a("s_add_u32 m0, m0, 16384")
        a(f"s_mul_i32 s{T1}, s{T0}, {64*3584}")
        for n in range(4):
            a(f"buffer_load_dwordx4 v10, s[{S_A}:{S_A+3}], s{T1} offen lds")
            a("s_add_u32 m0, m0, 16384")
            a("s_nop 0")
            a(f"buffer_load_dwordx4 v11, s[{S_B}:{S_B+3}], s{T1} offen lds")
            if n < 3:
                a(f"s_sub_u32 m0, m0, {16384 - 4096}")
                a(f"s_add_u32 s{T1}, s{T1}, {16*3584}")
        a(f"s_add_u32 s{CH}, s{CH}, 1")
        a(f"s_add_u32 s{WSO}, s{WSO}, 4096")
        a(f"s_and_b32 s{WSO}, s{WSO}, 0x3fff")
        a(f"s_or_b32 s{WSO}, s{WSO}, {PSC}")
        a(f"s_add_u32 s{SST}, s{SST}, {STG}")
        a(f"s_cmp_eq_u32 s{SST}, {3*STG}")
        a(f"s_cselect_b32 s{SST}, 0, s{SST}")
    assert PSC & 0x3fff == 0
    srd(a, S_DBG, P_DBG, 256)
    a(f"s_cmp_ge_u32 s{CB}, 14")
    a("s_cbranch_scc1 L_lkv")
    srd(a, S_A, P_G, 1835008)
    srd(a, S_B, P_U, 1835008)
    chunk_dma(0)
    a(f"s_mov_b32 s{CNT}, 6")
    a("s_branch L_ldi")
    a.label("L_ld")
    pollload(a, FLG, 8, S_DBG, "0")
    a.label("L_ldi")
    chunk_dma(0)
    a(f"s_sub_u32 s{CNT}, s{CNT}, 1")
    a("s_waitcnt vmcnt(13)")
    a("s_barrier")
    a("s_cbranch_scc0 L_ld")
    QF, X, Y, O, KF, VF = 8, 32, 48, 64, 96, 104
    DA, BF, AF = 128, 192, 208
    IDX, AK, AV, AT0, AT1, WDO, TRO, GA, GD0, GD1 = 19, 20, 21, 22, 23, 24, 25, 26, 27, 28
    a.label("L_ld6")
    srd(a, S_WS, P_WS, WS_SZ)
    spin(a, "L_kvc", FLG, 8, S_DBG, "0", slp=12)
    a(f"s_mov_b32 s{HD0}, {WS_FK}")
    pollload(a, FLG, 29, S_WS, f"s{HD0}", True)
    a(f"s_getpc_b64 s[{T4}:{T5}]")
    a.label("L_c1")
    a(f"s_add_u32 s{T4}, s{T4}, L_c1r - L_c1")
    a(f"s_addc_u32 s{T5}, s{T5}, 0")
    a("s_branch L_setup")
    a.label("L_c1r")
    if ROT: a(f"s_lshl_b32 s{CH}, s{II}, 2")
    else: a(f"s_mov_b32 s{CH}, 0")
    a(f"s_lshl_b32 s{T0}, s{CP}, 2")
    a(f"s_add_u32 s{CH}, s{CH}, s{T0}")
    a(f"s_lshl_b32 s{T2}, s{CP}, 12")
    a("s_waitcnt vmcnt(0)")
    spin(a, "L_kvp", FLG, 29, S_WS, f"s{HD0}", True, slp=8)
    stm(a, 'kvp')
    def kvgroup(idx, lds):
        a(f"s_add_u32 s{T0}, s{CH}, {idx}")
        a(f"s_and_b32 s{T0}, s{T0}, 127")
        a(f"s_lshl_b32 s{T0}, s{T0}, 10")
        a(f"s_add_u32 m0, s{T2}, {lds}")
        a(f"s_add_u32 s{T0}, s{T0}, {WS_KV}")
        for n in range(4):
            a(f"buffer_load_dwordx4 v2, s[{S_WS}:{S_WS+3}], s{T0} offen offset:{n*1024} sc1 lds")
    kvgroup(0, KVA)
    a("s_barrier")
    kvgroup(64, KVBB); kvgroup(64+16, KVBB+16384); kvgroup(16, KVA+16384); kvgroup(64+32, KVBB+32768)
    a("s_barrier")
    kvgroup(32, KVA+32768); kvgroup(64+48, KVBB+49152); kvgroup(48, KVA+49152)
    a("s_waitcnt vmcnt(24)")
    a("s_barrier")
    a("s_setprio 0")
    a(f"ds_read_b128 {vr(QF,4)}, v16")
    a(f"ds_read_b128 {vr(QF+4,4)}, v16 offset:1024")
    a("s_branch L_p2")

    a.label("L_comp")
    if CODEPF:
        a(f"s_and_b32 s{T0}, s{II}, 7")
        a(f"s_or_b32 s{T0}, s{T0}, s{CP}")
        a("s_cbranch_scc1 L_npf")
        a(f"s_getpc_b64 s[{T4}:{T5}]")
        a("v_lshlrev_b32 v5, 7, v0")
        a(f"global_load_dword v250, v5, s[{T4}:{T5}] offset:-1024")
        a("v_add_u32 v5, 0x2000, v5")
        a(f"v_min_u32 v5, {CODE_LAST}, v5")
        a(f"global_load_dword v250, v5, s[{T4}:{T5}] offset:-1024")
        a.label("L_npf")
    a("v_and_b32 v5, 31, v0")
    a("v_bfe_u32 v6, v0, 1, 3")
    a("v_xor_b32 v6, v6, v7")
    a("v_lshlrev_b32 v6, 4, v6")
    a("v_lshl_add_u32 v20, v5, 7, v6")
    a(f"s_lshl_b32 s{T0}, s{CP}, 12")
    a(f"v_add_u32 v20, s{T0}, v20")
    a("v_xor_b32 v21, 32, v20")
    a("v_xor_b32 v22, 64, v20")
    a("v_xor_b32 v23, 0x60, v20")
    for r in range(4): a(f"v_xor_b32 v{240+r}, 0x1000, v{20+r}")
    a("v_bfe_u32 v6, v0, 2, 2")
    a("v_lshl_add_u32 v5, v7, 3, v6")
    a("v_lshl_add_u32 v8, v6, 1, v14")
    a(f"s_and_b32 s{T0}, s{CP}, 1")
    a(f"s_lshl_b32 s{T0}, s{T0}, 2")
    a(f"v_xor_b32 v8, s{T0}, v8")
    a("v_lshlrev_b32 v8, 5, v8")
    a("v_lshl_add_u32 v8, v5, 8, v8")
    a("v_lshl_add_u32 v8, v14, 14, v8")
    a("v_and_b32 v9, 3, v0")
    a("v_lshl_add_u32 v8, v9, 3, v8")
    a("v_add_u32 v24, 16384, v8")
    a("v_xor_b32 v25, 32, v24")
    a("v_xor_b32 v26, 64, v24")
    a("v_xor_b32 v27, 0x60, v24")
    a("v_lshlrev_b32 v8, 6, v5")
    a("v_lshl_add_u32 v8, v14, 5, v8")
    a("v_lshl_add_u32 v8, v9, 3, v8")
    a(f"v_add_u32 v244, {PSC}, v8")
    a("s_waitcnt lgkmcnt(0)")
    srd(a, S_X, P_X, 2097152)
    srd(a, S_C, P_GW, 1024)
    a(f"s_lshl_b32 s{TB}, s{RB}, 7")
    a(f"s_lshl_b32 s{T1}, s{CB}, 3")
    a(f"s_add_u32 s{TB}, s{TB}, s{T1}")
    a(f"s_lshl_b32 s{T1}, s{CP}, 1")
    a(f"s_add_u32 s{TB}, s{TB}, s{T1}")
    a(f"s_lshl_b32 s{T1}, s{TB}, 10")
    a("v_lshlrev_b32 v5, 5, v0")
    a("v_and_b32 v6, 0x3ff, v5")
    a(f"buffer_load_dwordx4 v[32:35], v5, s[{S_X}:{S_X+3}], s{T1} offen")
    a(f"buffer_load_dwordx4 v[36:39], v5, s[{S_X}:{S_X+3}], s{T1} offen offset:16")
    a(f"buffer_load_dwordx4 v[40:43], v6, s[{S_C}:{S_C+3}], 0 offen")
    a(f"buffer_load_dwordx4 v[44:47], v6, s[{S_C}:{S_C+3}], 0 offen offset:16")
    srd(a, S_WS, P_WS, WS_SZ)
    ACC, FR, QA = 96, 32, 224
    for i in range(4): a(f"v_mov_b32 v{80+i}, 0")
    a("s_nop 1")
    for i in range(9): a(f"v_mfma_f32_32x32x16_bf16 {vr(ACC+16*i,16)}, v[80:83], v[80:83], 0")
    a("v_mov_b32 v31, 0")
    a("s_waitcnt vmcnt(0)")
    for i in range(8): a(f"v_dot2c_f32_bf16 v31, v{32+i}, v{40+i}")
    a("s_nop 2")
    for sh in (1, 2, 4, 8):
        a(f"v_add_f32_dpp v31, v31, v31 row_shr:{sh} row_mask:0xf bank_mask:0xf bound_ctrl:0")
        a("s_nop 1")
    a("v_add_f32_dpp v31, v31, v31 row_bcast:15 row_mask:0xa bank_mask:0xf")
    a(f"s_lshl_b32 s{T1}, s{TB}, 2")
    a(f"v_mul_f32 v31, {f32hex(-LOG2E)}, v31")
    a("v_exp_f32 v31, v31")
    a(f"s_add_u32 s{T1}, s{T1}, {WS_G}")
    a("v_add_f32 v31, 1.0, v31")
    a("v_rcp_f32 v31, v31")
    a("v_lshlrev_b32 v16, 2, v7")
    a(f"s_mov_b32 s{T4}, 0x80000000")
    a(f"s_mov_b32 s{T5}, 0x80000000")
    a(f"s_mov_b64 exec, s[{T4}:{T5}]")
    a(f"buffer_store_dword v31, v16, s[{S_WS}:{S_WS+3}], s{T1} offen sc1")
    a("s_mov_b64 exec, -1")
    srd(a, S_DBG, P_DBG, 256)
    a(f"s_xor_b32 s{T0}, s{CP}, 1")
    a(f"s_or_b32 s{T0}, s{T0}, s2")
    a("s_cbranch_scc1 L_nclr")
    a("v_mov_b32 v16, 0")
    a("v_mov_b32 v17, 0")
    a(f"s_mov_b32 s{T0}, {WS_FK}")
    a(f"buffer_store_dwordx2 v[16:17], v29, s[{S_WS}:{S_WS+3}], s{T0} offen sc1")
    a("s_waitcnt vmcnt(0)")
    a("v_mov_b32 v17, 1")
    a("s_mov_b64 exec, 1")
    a(f"buffer_store_dword v17, v16, s[{S_DBG}:{S_DBG+3}], 0 offen sc1")
    a("s_mov_b64 exec, -1")
    a.label("L_nclr")
    def reads(ks, buf):
        b = FR + 28 * buf
        a(f"ds_read_b128 {vr(b,4)}, v{20+ks}")
        a(f"ds_read_b64_tr_b16 {vr(b+24,2)}, v244 offset:{ks*1024}")
        a(f"ds_read_b64_tr_b16 {vr(b+26,2)}, v244 offset:{ks*1024+256}")
        for j in range(4):
            a(f"ds_read_b64_tr_b16 {vr(b+8+4*j,2)}, v{24+j} offset:{ks*4096}")
            a(f"ds_read_b64_tr_b16 {vr(b+10+4*j,2)}, v{24+j} offset:{ks*4096+1024}")
            if j == 0: a(f"ds_read_b128 {vr(b+4,4)}, v{240+ks}")
    def rdlines(ks, buf):
        save = a.lines; a.lines = []; reads(ks, buf); lines = a.lines; a.lines = save
        return lines
    def mf(buf, k):
        b = FR + 28 * buf
        if k == 0:
            a(f"v_mfma_f32_32x32x16_bf16 {vr(QA,16)}, {vr(b+24,4)}, {vr(b,4)}, {vr(QA,16)}")
            return
        j, i = (k-1) // 2, (k-1) % 2
        d = ACC + (i*4+j)*16
        a(f"v_mfma_f32_32x32x16_bf16 {vr(d,16)}, {vr(b+8+4*j,4)}, {vr(b+4*i,4)}, {vr(d,16)}")
    NEED = {0: 3, 1: 5, 2: 6, 3: 8, 5: 10, 7: 12}
    def kstep(buf, rd, extra=None):
        lines = rdlines(rd, buf ^ 1)
        for k in range(9):
            if k in NEED: a(f"s_waitcnt lgkmcnt({12 - NEED[k] + min(12, 2*k)})")
            mf(buf, k)
            a.lines += lines[2*k:2*k+2]
            if extra: extra(k)
    a(f"s_mov_b32 s{SST}, 0")
    a(f"s_mov_b32 s{CNT}, 7")
    a(f"s_cmp_ge_u32 s{CB}, 14")
    a("s_cbranch_scc1 L_ckv")
    stm(a, 'c0')
    a("s_barrier")
    stm(a, 'b0')
    reads(0, 0)
    a("s_branch L_ci")
    a.raw(".p2align 6")
    a.label("L_cl")
    lines = rdlines(0, 0)
    for k in range(1, 9):
        a.lines += lines[2*(k-1):2*k]
        mf(1, k)
    a.label("L_ci")
    def extra1(k):
        if k == 6:
            a(f"s_cmp_eq_u32 s{SST}, {2*STG}")
            a(f"s_mov_b32 s{T3}, {STG}")
            a(f"s_cselect_b32 s{T3}, {(-2*STG) & 0xffffffff}, s{T3}")
            a(f"s_add_u32 s{SST}, s{SST}, s{T3}")
        if k == 7:
            for r in (20, 21, 22): a(f"v_add_u32 v{r}, s{T3}, v{r}")
        if k == 8:
            for r in (240, 241, 242): a(f"v_add_u32 v{r}, s{T3}, v{r}")
    def extra(k):
        if k == 3: a("v_add_u32 v244, 4096, v244")
        if k == 4: a("v_and_b32 v244, 0x3fff, v244")
        if k == 5: a(f"v_or_b32 v244, {PSC}, v244")
        if k == 6:
            for r in (23, 243, 24): a(f"v_add_u32 v{r}, s{T3}, v{r}")
        if k == 7:
            for r in (25, 26, 27): a(f"v_add_u32 v{r}, s{T3}, v{r}")
        if k == 8:
            a(f"s_sub_u32 s{CNT}, s{CNT}, 1")
            if CHST:
                a("s_memtime s[88:89]")
                a(f"s_mov_b32 s90, 6")
                a(f"s_cselect_b32 s91, 1, 0")
                a(f"s_sub_u32 m0, s90, s{CNT}")
                a("s_waitcnt lgkmcnt(0)")
                a(f"v_writelane_b32 v28, s88, m0")
                a("s_cmp_eq_u32 s91, 1")
            a("s_waitcnt lgkmcnt(0)")
            a("s_barrier")
    kstep(0, 1); kstep(1, 2, extra1); kstep(0, 3, extra)
    mf(1, 0)
    a("s_cbranch_scc0 L_cl")
    for k in range(1, 9): mf(1, k)
    stm(a, 'p1end')
    a.label("L_qw")
    a(f"s_mov_b32 s{T3}, {f32hex(0.25*LOG2E)}")
    a(f"s_xor_b32 s{T0}, s{WV}, 4")
    a(f"s_lshl_b32 s{T0}, s{T0}, 12")
    a(f"s_add_u32 s{T0}, s{T0}, {RING}")
    a(f"v_add_u32 v5, s{T0}, v2")
    for r in range(16): a(f"v_mul_f32 v{QA+r}, s{T3}, v{QA+r}")
    lo = 1 - LOADER
    for r in range(8): a(f"v_cvt_pk_bf16_f32 v{248 + (r + 4*lo) % 8}, v{QA+2*r}, v{QA+2*r+1}")
    a("ds_write_b128 v5, v[252:255]")
    a("ds_write_b128 v5, v[248:251] offset:1024")
    a(f"s_lshl_b32 s{T0}, s{RB}, 2")
    a(f"s_add_u32 s{T0}, s{T0}, s{CP}")
    a(f"s_xor_b32 s{T4}, s{T0}, 1")
    a(f"s_and_b32 s{T1}, s{CP}, 1")
    a(f"s_lshl_b32 s{T1}, s{T1}, 2")
    a(f"s_lshl_b32 s{T2}, s{CB}, 3")
    a(f"s_add_u32 s{T1}, s{T1}, s{T2}")
    a(f"s_mul_i32 s{T2}, s{T0}, 144")
    a(f"s_add_u32 s{T2}, s{T2}, s{T1}")
    a(f"s_lshl_b32 s{T2}, s{T2}, 10")
    a(f"s_mul_i32 s{T3}, s{T4}, 144")
    a(f"s_add_u32 s{T3}, s{T3}, s{T1}")
    a(f"s_lshl_b32 s{T3}, s{T3}, 10")
    a(f"s_mov_b32 s{XSO}, {f32hex(-LOG2E)}")
    a(f"s_cmp_ge_u32 s{CB}, 14")
    a("s_waitcnt lgkmcnt(0)")
    a("s_barrier")
    a("s_cbranch_scc1 L_qe")
    def h_tile(i, j):
        d = ACC + (i*4+j)*16
        for r in range(8): a(f"v_mul_f32 v{d+r}, s{XSO}, v{d+r}")
        for r in range(8): a(f"v_exp_f32 v{d+r}, v{d+r}")
        for r in range(8): a(f"v_add_f32 v{d+r}, 1.0, v{d+r}")
        for r in range(8): a(f"v_rcp_f32 v{d+r}, v{d+r}")
        for r in range(8): a(f"v_mul_f32 v{d+r}, v{d+r}, v{d+8+r}")
        for r in range(4): a(f"v_cvt_pk_bf16_f32 v{d+8+r}, v{d+2*r}, v{d+2*r+1}")
        a(f"buffer_store_dwordx4 {vr(d+8,4)}, v2, s[{S_WS}:{S_WS+3}], s{T2+i} offen offset:{j*1024} sc1")
    for j in range(4):
        h_tile(0, j); h_tile(1, j)
    a.label("L_qe")
    stm(a, 'epi')
    if CHST: a("v_mov_b32 v1, v28")
    a(f"s_getpc_b64 s[{T4}:{T5}]")
    a.label("L_c2")
    a(f"s_add_u32 s{T4}, s{T4}, L_c2r - L_c2")
    a(f"s_addc_u32 s{T5}, s{T5}, 0")
    a.label("L_setup")
    for r in range(8, 16): a(f"v_mov_b32 v{Y+r}, 0")
    a(f"s_cmp_eq_u32 s{TP}, 0")
    a(f"s_cselect_b32 s{T0}, {KVA}, {KVBB}")
    a(f"v_add_u32 v{AK}, s{T0}, v2")
    a("v_and_b32 v16, 15, v0")
    a("v_lshlrev_b32 v16, 4, v16")
    a("v_lshl_add_u32 v16, v7, 8, v16")
    a(f"s_add_u32 s{T0}, s{T0}, 1024")
    a(f"v_add_u32 v{AV}, s{T0}, v16")
    a(f"v_mov_b32 v{IDX}, 0xdddd")
    a("v_and_b32 v16, 27, v0")
    a("v_cmp_eq_u32 vcc, 16, v16")
    a("v_mov_b32 v17, 0x3f803f80")
    a(f"s_mov_b32 s{VM0}, 0xffff")
    a(f"v_cndmask_b32 v{VF}, 0, v17, vcc")
    for i in range(1, 16): a(f"v_mov_b32 v{VF+i}, v{VF}")
    a(f"s_mov_b32 s{VM1}, 0xffff")
    for d in (O, O+16, DA, DA+16, DA+32, DA+48, AF):
        a(f"v_mfma_f32_32x32x16_bf16 {vr(d,16)}, {vr(Y+8,4)}, {vr(Y+8,4)}, 0")
    srd(a, S_A, P_D, 1835008)
    srd(a, S_B, P_WO, 524288)
    srd(a, S_C, P_OUT, 2097152)
    a(f"s_and_b32 s{T0}, s{CB}, 1")
    a(f"s_lshl_b32 s{TB}, s{RB}, 1")
    a(f"s_add_u32 s{TB}, s{TB}, s{T0}")
    a(f"s_lshr_b32 s{NB}, s{CB}, 1")
    a("v_lshrrev_b32 v5, 3, v0")
    a("v_bfe_u32 v6, v0, 2, 1")
    a("v_xor_b32 v6, v6, v14")
    a("v_lshlrev_b32 v6, 6, v6")
    a(f"v_lshl_add_u32 v{WDO}, v5, 10, v6")
    a("v_and_b32 v17, 3, v0")
    a(f"v_lshl_add_u32 v{WDO}, v17, 4, v{WDO}")
    a(f"s_lshl_b32 s{T0}, s{NB}, 7")
    a(f"v_add_u32 v{WDO}, s{T0}, v{WDO}")
    a("v_bfe_u32 v5, v0, 2, 2")
    a("v_lshl_add_u32 v6, v7, 2, v5")
    a("v_lshlrev_b32 v6, 7, v6")
    a("v_bfe_u32 v5, v0, 3, 1")
    a("v_lshl_add_u32 v6, v5, 6, v6")
    a("v_lshl_add_u32 v6, v14, 5, v6")
    a(f"v_lshl_add_u32 v{TRO}, v17, 3, v6")
    a(f"s_lshl_b32 s{XSO}, s{WV}, 12")
    a(f"s_add_u32 s{XSO}, s{XSO}, {RING}")
    a(f"v_add_u32 v{AT0}, s{XSO}, v{TRO}")
    a(f"v_xor_b32 v{AT1}, 64, v{AT0}")
    a(f"s_lshl_b32 s{SST}, s{TB}, 1")
    a(f"s_add_u32 s{SST}, s{SST}, s{TP}")
    a(f"s_mul_i32 s{T0}, s{WV}, 14")
    a(f"s_mul_i32 s{HSO}, s{SST}, 144")
    a(f"s_add_u32 s{HSO}, s{HSO}, s{T0}")
    a(f"s_lshl_b32 s{HSO}, s{HSO}, 10")
    a(f"s_xor_b32 s{T1}, s{SST}, 1")
    a(f"s_mul_i32 s{HS1}, s{T1}, 144")
    a(f"s_add_u32 s{HS1}, s{HS1}, s{T0}")
    a(f"s_lshl_b32 s{HS1}, s{HS1}, 10")
    a(f"s_mul_i32 s{WSO}, s{WV}, 229376")
    for i in range(4): a(f"v_mov_b32 v{BF+12+i}, 0")
    a(f"v_add_u32 v16, s{XSO}, v2")
    a(f"s_setpc_b64 s[{T4}:{T5}]")

    a.label("L_c2r")
    for r in range(8): a(f"v_mov_b32 v{QF+r}, v{248+r}")
    a.label("L_p2")
    stm(a, 'b8')
    a(f"ds_read_b128 {vr(KF,4)}, v{AK}")
    a(f"s_mov_b64 exec, s[{VM0}:{VM1}]")
    a(f"ds_read_b128 {vr(VF,4)}, v{AV}")
    a(f"ds_read_b128 {vr(VF+4,4)}, v{AV} offset:512")
    a("s_mov_b64 exec, -1")
    if PRIO:
        a(f"s_cmp_eq_u32 s{TP}, {PRIO-1}")
        a("s_cbranch_scc0 L_prio")
        a("s_setprio 1")
        a.label("L_prio")
    a("s_waitcnt lgkmcnt(2)")
    a(f"v_mfma_f32_32x32x16_bf16 {vr(X,16)}, {vr(KF,4)}, {vr(QF,4)}, 0")
    a(f"s_mov_b32 s{CH}, 0")
    a("s_waitcnt lgkmcnt(0)")
    a("s_nop 9")
    stm(a, 'p2start')

    def wdma(slot, tag):
        for n in range(2):
            a(f"s_add_u32 m0, s{XSO}, {slot*2048 + n*1024}")
            a(f"s_add_u32 s{T0}, s{WSO}, {n*8192}") if n else a("s_nop 0")
            a.vmem(f"buffer_load_dwordx4 v{WDO}, s[{S_A}:{S_A+3}], s{T0 if n else WSO} offen lds", tag)
        a(f"s_add_u32 s{WSO}, s{WSO}, 16384")
    def bload(bufi, i, off, tag):
        a.vmem(f"buffer_load_dwordx4 {vr(BF+8*bufi+4*i,4)}, v2, s[{S_WS}:{S_WS+3}], s{HSO if i == 0 else HS1} offen offset:{off} sc1", tag)
    def trread(slot, k):
        j, r = k // 2, k % 2
        a(f"ds_read_b64_tr_b16 {vr(AF+8*slot+4*j+2*r,2)}, v{AT0+j} offset:{slot*2048 + r*1024}")
    def gm(s, i, j):
        d = DA + (i*2+j)*16
        a(f"v_mfma_f32_32x32x16_bf16 {vr(d,16)}, {vr(AF+8*s+4*j,4)}, {vr(BF+8*s+4*i,4)}, {vr(d,16)}")
    def wopiece(n):
        a(f"s_add_u32 m0, s{T2}, {n*1024}")
        a(f"s_add_u32 s{T0}, s{T3}, {n*8192}")
        a.vmem(f"buffer_load_dwordx4 v{WDO}, s[{S_B}:{S_B+3}], s{T0} offen lds", "wo")

    def body(mode):
        gemm = mode in ("gemm", "last")
        for u in range(8):
            t, hd = u // 2, u % 2
            cur, nxt = (X, Y) if hd == 0 else (Y, X)
            p, q = u // 4, u % 4
            def ex(lo, hi):
                for r in range(lo, hi): a(f"v_exp_f32 v{cur+r}, v{cur+r}")
            ex(0, 2)
            pv = (t - 1) % 2 if hd == 0 else t % 2
            a(f"v_smfmac_f32_32x32x32_bf16 {vr(O+16*(1-hd),16)}, {vr(VF+8*pv+4,4)}, {vr(nxt+8,8)}, v{IDX}")
            lastt = mode == "last" and t == 3
            if hd == 0:
                if not lastt:
                    a(f"s_mov_b64 exec, s[{VM0}:{VM1}]")
                    a(f"ds_read_b128 {vr(VF+8*((t+1)%2),4)}, v{AV} offset:{(t+1)*2048}")
                    a(f"ds_read_b128 {vr(VF+8*((t+1)%2)+4,4)}, v{AV} offset:{(t+1)*2048+512}")
                    a("s_mov_b64 exec, -1")
            else:
                a("s_waitcnt lgkmcnt(0)")
            ex(2, 6)
            kb = t % 2 if hd == 0 else (t+1) % 2
            if not (mode == "last" and u == 7):
                a(f"v_mfma_f32_32x32x16_bf16 {vr(nxt,16)}, {vr(KF+4*kb,4)}, {vr(QF+4*(1-hd),4)}, 0")
            if hd == 0:
                if gemm and q == 0: a.wait_vm(f"B{p}0")
                if not lastt: a(f"ds_read_b128 {vr(KF+4*((t+1)%2),4)}, v{AK} offset:{(t+1)*2048}")
                if gemm and q == 0: trread(p, 0); trread(p, 1)
            elif gemm and q == 1: wdma(p, f"W{p}")
            elif gemm and q == 3: a.wait_vm(f"B{p}1")
            ex(6, 10)
            a(f"v_smfmac_f32_32x32x32_bf16 {vr(O+16*hd,16)}, {vr(VF+8*(t%2),4)}, {vr(cur,8)}, v{IDX}")
            if gemm and q == 0: trread(p, 2); trread(p, 3)
            if not gemm: a("s_nop 0")
            if mode == "last" and u < 4: wopiece(2*u); wopiece(2*u+1)
            if u == 7 and gemm:
                a(f"s_add_u32 s{HSO}, s{HSO}, 2048")
                a(f"s_add_u32 s{HS1}, s{HS1}, 2048")
            ex(10, 14)
            if gemm:
                if q == 0:
                    gm(1-p, 1, 1); bload(1-p, 1, (p+1)*1024, f"B{1-p}1")
                elif q == 1: gm(p, 0, 0)
                elif q == 2:
                    gm(p, 0, 1); bload(p, 0, (p+2)*1024, f"B{p}0")
                else:
                    gm(p, 1, 0)
                    if u == 7 and mode == "gemm": a(f"s_sub_u32 s{CNT}, s{CNT}, 1")
            if u == 7 and mode != "last":
                a(f"v_add_u32 v{AK}, 8192, v{AK}")
                a(f"v_add_u32 v{AV}, 8192, v{AV}")
            ex(14, 16)

    a.label("L_a0")
    body("plain")
    a(f"s_lshl_b32 s{T5}, s{RB}, 11")
    a(f"s_add_u32 s{T5}, s{T5}, {WS_FH}")
    a(f"s_cmp_lg_u32 s{CH}, 0")
    a("s_cbranch_scc1 L_a1")
    a(f"s_mov_b32 s{CH}, 1")
    a("s_waitcnt vmcnt(0)")
    wdma(0, "x"); wdma(1, "x")
    a("s_barrier")
    a(f"s_cmp_lg_u32 s{WV}, 0")
    a("s_cbranch_scc1 L_a0")
    a(f"s_lshl_b32 s{T0}, s{CB}, 7")
    a(f"s_add_u32 s{T0}, s{T0}, s{T5}")
    a("v_mov_b32 v16, 0")
    a("v_mov_b32 v17, 1")
    a("s_mov_b64 exec, 1")
    a(f"buffer_store_dword v17, v16, s[{S_WS}:{S_WS+3}], s{T0} offen sc1")
    a("s_mov_b64 exec, -1")
    a("s_branch L_a0")
    a.label("L_a1")
    stm(a, 'hp0')
    a("v_and_b32 v17, 0x780, v29")
    pollload(a, FLG, 17, S_WS, f"s{T5}")
    a("s_waitcnt vmcnt(0)")
    spin(a, "L_hp", FLG, 17, S_WS, f"s{T5}")
    stm(a, 'hp1')
    bload(0, 0, 0, "x"); bload(0, 1, 0, "x")
    a(f"v_and_b32 v16, 0x7c, v{L4}")
    a(f"s_lshl_b32 s{T0}, s{RB}, 9")
    a(f"s_lshl_b32 s{T1}, s{CP}, 7")
    a(f"s_add_u32 s{T0}, s{T0}, s{T1}")
    a(f"s_add_u32 s{T0}, s{T0}, {WS_G}")
    a(f"buffer_load_dword v{GA}, v16, s[{S_WS}:{S_WS+3}], s{T0} offen sc1")
    a(f"s_lshl_b32 s{T0}, s{SST}, 7")
    a(f"s_add_u32 s{T0}, s{T0}, {WS_G}")
    a(f"buffer_load_dword v{GD0}, v16, s[{S_WS}:{S_WS+3}], s{T0} offen sc1")
    a(f"s_xor_b32 s{T0}, s{T0}, 128")
    a(f"buffer_load_dword v{GD1}, v16, s[{S_WS}:{S_WS+3}], s{T0} offen sc1")
    bload(1, 0, 1024, "x")
    a(f"s_mov_b32 s{CNT}, 4")
    steady = ["W0", "W0", "B00", "B01", "W1", "W1", "B10"]
    a.vm = list(steady)
    a.label("L_g")
    body("gemm")
    assert a.vm[-7:] == steady, a.vm
    a("s_cbranch_scc0 L_g")
    a(f"s_mul_i32 s{T2}, s{TP}, {KVA}")
    a(f"s_lshl_b32 s{T3}, s{CP}, 13")
    a(f"s_add_u32 s{T2}, s{T2}, s{T3}")
    a(f"s_lshl_b32 s{T3}, s{WV}, 16")
    a("s_barrier")
    a.vm = list(steady)
    body("last")
    a(f"s_mul_i32 s{WSO}, s{TP}, {KVA}")
    a(f"s_xor_b32 s{T0}, s{WSO}, {KVA}")
    a(f"s_mul_i32 s{T1}, s{CP}, 6144")
    a(f"s_add_u32 s{T1}, s{T1}, 32768")
    a(f"v_smfmac_f32_32x32x32_bf16 {vr(O+16,16)}, {vr(VF+8+4,4)}, {vr(Y+8,8)}, v{IDX}")
    gm(1, 1, 1)
    bload(1, 1, 1024, "B11")
    stm(a, 'loopend')
    a(f"s_add_u32 s{T4}, s{T0}, s{T1}")
    a(f"s_add_u32 s{T5}, s{WSO}, s{T1}")
    a(f"v_add_u32 v{AK}, s{T4}, v2")
    a(f"v_add_u32 v17, s{T4}, v{L4}")
    a(f"v_add_u32 v16, s{T5}, v2")
    a(f"s_lshl_b32 s{T1}, s{CP}, 11")
    a(f"s_add_u32 s{T1}, s{T1}, 57344")
    a(f"s_add_u32 s{T0}, s{T0}, s{T1}")
    a(f"s_add_u32 s{WSO}, s{WSO}, s{T1}")
    a(f"v_add_u32 v{AV}, s{T0}, v2")
    a(f"ds_write_b128 v{AK}, {vr(O+16,4)}")
    a(f"ds_write_b128 v{AK}, {vr(O+20,4)} offset:1024")
    a(f"ds_write_b32 v17, v{O+24} offset:2048")
    a(f"v_add_u32 v17, s{T5}, v{L4}")
    a(f"s_lshl_b32 s{T2}, s{RB}, 2")
    a(f"s_add_u32 s{T2}, s{T2}, s{CP}")
    a(f"s_mul_i32 s{T3}, s{T2}, 144")
    a(f"s_lshl_b32 s{T1}, s{CB}, 1")
    a(f"s_add_u32 s{T1}, s{T1}, s{TP}")
    a(f"s_add_u32 s{T3}, s{T3}, s{T1}")
    a(f"s_add_u32 s{T3}, s{T3}, 112")
    a(f"s_lshl_b32 s{T3}, s{T3}, 10")
    a(f"s_lshl_b32 s{T2}, s{T2}, 5")
    a(f"s_add_u32 s{T2}, s{T2}, s{T1}")
    a(f"s_lshl_b32 s{T2}, s{T2}, 7")
    a(f"s_add_u32 s{T2}, s{T2}, {WS_FO}")
    a(f"s_mov_b32 s{CH}, 0x1f800000")
    a(f"s_mov_b32 s{CNT}, 0x5f800000")
    a(f"s_mov_b32 s{T0}, 0x7f000000")
    a.wait_vm("wo", " lgkmcnt(0)")
    a("s_barrier")
    stm(a, 'b1')
    a(f"ds_read_b32 v{X+8}, v17 offset:2048")
    a(f"ds_read_b128 {vr(X,4)}, v16")
    a(f"ds_read_b128 {vr(X+4,4)}, v16 offset:1024")
    a("s_waitcnt lgkmcnt(0)")
    for r in (8, 0, 1, 2, 3, 4, 5, 6, 7): a(f"v_add_f32 v{O+r}, v{O+r}, v{X+r}")
    a(f"v_max3_f32 v5, |v{O}|, |v{O+1}|, |v{O+2}|")
    a(f"v_max3_f32 v5, |v{O+3}|, |v{O+4}|, v5")
    a(f"v_max3_f32 v5, |v{O+5}|, |v{O+6}|, v5")
    a(f"v_max_f32 v5, |v{O+7}|, v5")
    a(f"v_cmp_nlt_f32 s[{T4}:{T5}], s{CH}, v{O+8}")
    a(f"v_cmp_ngt_f32 vcc, s{CNT}, v{O+8}")
    a(f"s_or_b64 s[{T4}:{T5}], s[{T4}:{T5}], vcc")
    a(f"v_cmp_ngt_f32 vcc, s{T0}, v5")
    a(f"s_or_b64 s[{T4}:{T5}], s[{T4}:{T5}], vcc")
    a("s_cbranch_scc1 L_fb")
    a.label("L_fin")
    a(f"v_rcp_f32 v5, v{O+8}")
    a("s_setprio 0")
    a(f"v_mul_f32 v5, v5, v{GA}")
    for r in range(8): a(f"v_mul_f32 v{O+r}, v{O+r}, v5")
    for r in range(4): a(f"v_cvt_pk_bf16_f32 v{X+r}, v{O+2*r}, v{O+2*r+1}")
    a(f"buffer_store_dwordx4 {vr(X,4)}, v2, s[{S_WS}:{S_WS+3}], s{T3} offen sc1")
    stm(a, 'ost')
    a("s_waitcnt vmcnt(1)")
    for k in range(4): trread(0, k)
    for k in range(4): trread(1, k)
    a(f"s_lshr_b32 s{T0}, s{CP}, 1")
    a(f"s_mul_i32 s{T0}, s{T0}, {KVA}")
    a(f"s_and_b32 s{T1}, s{CP}, 1")
    a(f"s_lshl_b32 s{T1}, s{T1}, 14")
    a(f"s_add_u32 s{HSO}, s{T0}, s{T1}")
    a(f"v_add_u32 v{AT0}, s{HSO}, v{TRO}")
    a(f"v_xor_b32 v{AT1}, 64, v{AT0}")
    a(f"v_sub_f32 v{GD1}, 1.0, v{GD1}")
    a(f"v_sub_f32 v{GD0}, 1.0, v{GD0}")
    a(f"v_add_u32 v17, s{WSO}, v2")
    a("v_mov_b32 v6, 0")
    a("v_mov_b32 v5, 1")
    WF = 64
    a("s_waitcnt lgkmcnt(0)")
    k = 0
    for i in (1, 0):
        for s_ in range(2):
            for j in range(2):
                gm(s_, i, j)
                for jj in range(2):
                    for r in range(2):
                        a(f"ds_read_b64_tr_b16 {vr(WF+8*k+4*jj+2*r,2)}, v{AT0+jj} offset:{k*2048 + r*1024}")
                k += 1
    a("s_waitcnt vmcnt(0)")
    a("s_mov_b64 exec, 1")
    a(f"buffer_store_dword v5, v6, s[{S_WS}:{S_WS+3}], s{T2} offen sc1")
    a("s_mov_b64 exec, -1")
    stm(a, 'ofl')
    for g in range(8):
        for i in range(4): a(f"v_mul_f32 v{DA+32+4*g+i}, v{DA+32+4*g+i}, v{GD1}")
        a(f"ds_write_b128 v{16 if g < 6 else 17}, {vr(DA+32+4*g,4)} offset:{(g%6)*1024}")
    for i in range(32): a(f"v_mul_f32 v{DA+i}, v{DA+i}, v{GD0}")
    a("v_and_b32 v17, 0x380, v29")
    a(f"s_lshl_b32 s{T5}, s{SST}, 12")
    a(f"s_lshl_b32 s{T0}, s{CP}, 10")
    a(f"s_add_u32 s{T5}, s{T5}, s{T0}")
    a(f"s_add_u32 s{T5}, s{T5}, {WS_FO}")
    a("s_waitcnt lgkmcnt(0)")
    a("s_barrier")
    stm(a, 'b2')
    pollload(a, FLG, 17, S_WS, f"s{T5}")
    for g in range(8): a(f"ds_read_b128 {vr(X+4*g,4)}, v{AK if g < 6 else AV} offset:{(g%6)*1024}")
    a(f"s_mul_i32 s{T0}, s{SST}, 144")
    a(f"s_lshl_b32 s{T1}, s{CP}, 3")
    a(f"s_add_u32 s{T0}, s{T0}, s{T1}")
    a(f"s_add_u32 s{T0}, s{T0}, 112")
    a(f"s_lshl_b32 s{T0}, s{T0}, 10")
    a(f"s_add_u32 s{T1}, s{T0}, 4096")
    a("v_and_b32 v5, 31, v0")
    a("v_and_b32 v6, 15, v0")
    a("v_xor_b32 v6, v6, v7")
    a("v_lshlrev_b32 v6, 4, v6")
    a("v_lshl_add_u32 v6, v5, 8, v6")
    a(f"s_lshl_b32 s{T3}, s{TP}, 13")
    a(f"s_add_u32 s{T2}, s{HSO}, s{T3}")
    a(f"v_add_u32 v8, s{T2}, v6")
    for g in range(1, 8): a(f"v_xor_b32 v{8+g}, {32*g}, v8")
    a("s_waitcnt lgkmcnt(0)")
    for r in range(32): a(f"v_add_f32 v{DA+r}, v{DA+r}, v{X+r}")
    a("s_waitcnt vmcnt(0)")
    stm(a, 'op0')
    spin(a, "L_op", FLG, 17, S_WS, f"s{T5}", slp=2)
    stm(a, 'op1')
    for s_ in range(8):
        a(f"buffer_load_dwordx4 {vr(192+4*s_,4)}, v2, s[{S_WS}:{S_WS+3}], s{T0 + s_//4} offen offset:{(s_%4)*1024} sc1")
    a("v_lshrrev_b32 v5, 3, v0")
    a(f"s_lshl_b32 s{T2}, s{WV}, 3")
    a(f"v_add_u32 v5, s{T2}, v5")
    a("v_and_b32 v6, 7, v0")
    a("v_lshlrev_b32 v16, 4, v6")
    a("v_lshlrev_b32 v6, 1, v6")
    a("v_and_b32 v17, 15, v5")
    a("v_xor_b32 v6, v6, v17")
    a("v_lshlrev_b32 v6, 4, v6")
    a("v_lshl_add_u32 v6, v5, 8, v6")
    a("v_xor_b32 v17, 16, v6")
    a(f"v_add_u32 v20, {KVA}, v6")
    a(f"v_add_u32 v21, {KVA}, v17")
    a("v_lshl_add_u32 v16, v5, 10, v16")
    a(f"s_lshl_b32 s{T2}, s{TB}, 16")
    a(f"s_lshl_b32 s{T3}, s{NB}, 7")
    a(f"s_add_u32 s{T2}, s{T2}, s{T3}")
    for s_ in range(8):
        a(f"s_waitcnt vmcnt({7-s_})")
        for j in range(2):
            a(f"v_mfma_f32_32x32x16_bf16 {vr(DA+16*j,16)}, {vr(WF+8*s_+4*j,4)}, {vr(192+4*s_,4)}, {vr(DA+16*j,16)}")
    stm(a, 'omf')
    a("s_nop 10")
    for g in range(8): a(f"ds_write_b128 v{8+g}, {vr(DA+4*g,4)}")
    a("s_waitcnt lgkmcnt(0)")
    a("s_barrier")
    for k in range(4):
        a(f"ds_read_b128 {vr(X+8*k,4)}, v{6 if k < 2 else 20} offset:{(k%2)*16384}")
        a(f"ds_read_b128 {vr(X+8*k+4,4)}, v{17 if k < 2 else 21} offset:{(k%2)*16384}")
    for k in range(1, 4):
        a(f"s_waitcnt lgkmcnt({6-2*k})")
        for r in range(8): a(f"v_add_f32 v{X+r}, v{X+r}, v{X+8*k+r}")
    for r in range(4): a(f"v_cvt_pk_bf16_f32 v{O+r}, v{X+2*r}, v{X+2*r+1}")
    a(f"buffer_store_dwordx4 {vr(O,4)}, v16, s[{S_C}:{S_C+3}], s{T2} offen")
    if asmlib.STAMP: a("s_waitcnt vmcnt(0)")
    stamp(a, 6); stamp_real(a, 7)
    stamp_dump(a, 0, P_WS, WV, 4)
    if CHST:
        a("s_lshl_b32 s80, s2, 3")
        a(f"s_add_u32 s80, s80, s{WV}")
        a("s_lshl_b32 s80, s80, 7")
        a(f"s_add_u32 s80, s80, {asmlib.WS_STAMP + 0x100000}")
        a("v_cmp_gt_u32 vcc, 8, v0")
        a("v_subrev_u32 v1, s86, v1")
        a("s_mov_b64 exec, vcc")
        a(f"buffer_store_dword v1, v{L4}, s[76:79], s80 offen")
    a.label("L_end")
    a("s_endpgm")

    WB = 131072
    a.label("L_lkv")
    srd(a, S_A, P_WK, 16384)
    srd(a, S_B, P_WV, 16384)
    a(f"s_and_b32 s{T2}, s{CB}, 1")
    a(f"s_mov_b32 s{CNT}, 0")
    a.label("L_lk0")
    a(f"s_lshl_b32 s{T1}, s{RB}, 17")
    a(f"s_lshl_b32 s{T0}, s{T2}, 16")
    a(f"s_add_u32 s{T1}, s{T1}, s{T0}")
    a(f"s_lshl_b32 s{T0}, s{CP}, 8")
    a(f"s_add_u32 s{T1}, s{T1}, s{T0}")
    a(f"s_lshl_b32 s{T0}, s{CP}, 15")
    a(f"s_lshl_b32 s{T3}, s{T2}, 13")
    a(f"s_add_u32 s{T0}, s{T0}, s{T3}")
    for c in range(2):
        for n in range(8):
            a(f"s_add_u32 m0, s{T0}, {c*16384 + n*1024}")
            a(f"s_add_u32 s{T3}, s{T1}, {c*128 + (n//2)*16384}")
            a(f"buffer_load_dwordx4 v{3 if n % 2 == 0 else 15}, s[{S_X}:{S_X+3}], s{T3} offen lds")
    a(f"s_cmp_lg_u32 s{CNT}, 0")
    a("s_cbranch_scc1 L_lk1")
    a(f"s_lshl_b32 s{T0}, s{CP}, 13")
    for c in range(2):
        for m, sd in enumerate((S_A, S_B)):
            a(f"s_add_u32 m0, s{T0}, {WB + c*4096 + m*2048}")
            a(f"s_add_u32 s{T3}, s{NB}, {c*2048}")
            a(f"buffer_load_dwordx4 v2, s[{sd}:{sd+3}], s{T3} offen lds")
            a(f"buffer_load_dwordx4 v2, s[{sd}:{sd+3}], s{T3} offen offset:1024 lds")
    a("s_waitcnt vmcnt(0)")
    a("s_barrier")
    a(f"s_xor_b32 s{T2}, s{T2}, 1")
    a(f"s_mov_b32 s{CNT}, 1")
    a("s_branch L_lk0")
    a.label("L_lk1")
    a("s_barrier")
    pollload(a, FLG, 8, S_DBG, "0")
    for c in range(8):
        a(f"s_add_u32 m0, s{WLD}, {WB + c*4096}")
        a(f"s_mov_b32 s{T3}, {c*65536}")
        a(f"buffer_load_dwordx4 v12, s[{S_C}:{S_C+3}], s{T3} offen lds")
    a("s_waitcnt vmcnt(0)")
    a("s_barrier")
    a("s_barrier")
    a("s_branch L_ld6")
    a.label("L_ckv")
    a(f"s_and_b32 s{T0}, s{CB}, 1")
    a(f"s_lshl_b32 s{T0}, s{T0}, 1")
    a(f"s_and_b32 s{T1}, s{CP}, 1")
    a(f"s_add_u32 s{T2}, s{T0}, s{T1}")
    a(f"s_sub_u32 s{T0}, s{T2}, s{CP}")
    a(f"s_lshl_b32 s{T0}, s{T0}, 12")
    for r in range(4): a(f"v_add_u32 v{240+r}, s{T0}, v{20+r}")
    a(f"v_add_u32 v24, {(WB - PSC) & 0xffffffff}, v244")
    a("v_bfe_u32 v6, v0, 2, 2")
    a("v_lshl_add_u32 v5, v7, 3, v6")
    a("v_lshlrev_b32 v5, 5, v5")
    a("v_lshl_add_u32 v5, v14, 11, v5")
    a("v_and_b32 v6, 3, v0")
    a("v_lshl_add_u32 v5, v6, 3, v5")
    a(f"v_add_u32 v244, {WB}, v5")
    a(f"s_lshl_b32 s{T0}, s{RB}, 2")
    a(f"s_add_u32 s{T2}, s{T2}, s{T0}")
    a("v_mov_b32 v8, 0")
    a(f"s_lshl_b32 s{T1}, s{T2}, 13")
    a(f"s_add_u32 s{T1}, s{T1}, {WS_FH}")
    a(f"s_cmp_ge_u32 s{CP}, 2")
    a(f"s_cselect_b32 s{T1}, {WS_SZ}, s{T1}")
    a(f"buffer_store_dword v8, v29, s[{S_WS}:{S_WS+3}], s{T1} offen sc1")
    def chain(lbl, ax, acc, kso, rdo, swap=False):
        def rd(k):
            c, ks = k // 4, k % 4
            b = 128 + k*8
            a(f"ds_read_b128 {vr(b,4)}, v{ax+ks} offset:{c*16384}")
            a(f"ds_read_b64_tr_b16 {vr(b+4,2)}, v{ax+4} offset:{c*4096 + ks*kso}")
            a(f"ds_read_b64_tr_b16 {vr(b+6,2)}, v{ax+4} offset:{c*4096 + ks*kso + rdo}")
        a(f"s_mov_b32 s{CNT}, 3")
        a.label(lbl)
        for k in range(4): rd(k)
        a(f"s_sub_u32 s{CNT}, s{CNT}, 1")
        for k in range(8):
            b = 128 + k*8
            a(f"s_waitcnt lgkmcnt({9 if k < 5 else 21-3*k})")
            a(f"v_mfma_f32_32x32x16_bf16 {vr(acc,16)}, {vr(b if swap else b+4,4)}, {vr(b+4 if swap else b,4)}, {vr(acc,16)}")
            if k < 4: rd(k+4)
            if k == 4:
                for r in range(4): a(f"v_add_u32 v{ax+r}, 32768, v{ax+r}")
                a(f"v_add_u32 v{ax+4}, 8192, v{ax+4}")
        a(f"s_cbranch_scc0 {lbl}")
    a(f"s_lshl_b32 s{T4}, s{T2}, 11")
    a(f"s_add_u32 s{T4}, s{T4}, {WS_KV}")
    a(f"s_lshl_b32 s{T5}, s{T2}, 7")
    a(f"s_add_u32 s{T5}, s{T5}, {WS_FK}")
    a("s_barrier")
    pollload(a, FLG, 8, S_DBG, "0")
    a(f"s_cmp_ge_u32 s{CP}, 2")
    a("s_cbranch_scc1 L_ckb")
    chain("L_ck", 240, ACC, 512, 128)
    a("v_and_b32 v5, 0x33, v0")
    a("v_bfe_u32 v6, v0, 2, 1")
    a("v_lshl_or_b32 v5, v6, 3, v5")
    a("v_bfe_u32 v6, v0, 3, 1")
    a("v_lshl_or_b32 v5, v6, 2, v5")
    a("v_lshlrev_b32 v5, 4, v5")
    a("s_nop 6")
    for r in range(4): a(f"v_cvt_pk_bf16_f32 v{80+r}, v{ACC+2*r}, v{ACC+2*r+1}")
    a(f"buffer_store_dwordx4 v[80:83], v5, s[{S_WS}:{S_WS+3}], s{T4} offen sc1")
    a("s_branch L_ckf")
    a.label("L_ckb")
    chain("L_cv", 240, ACC, 512, 128, True)
    a("v_and_b32 v5, 15, v0")
    a("v_lshlrev_b32 v5, 4, v5")
    a("v_lshl_add_u32 v5, v7, 8, v5")
    a(f"s_add_u32 s{T5}, s{T5}, 4")
    a(f"s_mov_b32 s{T0}, 0xffff0000")
    a(f"s_mov_b32 s{T1}, 0xffff0000")
    a("s_nop 6")
    for r in range(8): a(f"v_cvt_pk_bf16_f32 v{80+r}, v{ACC+2*r}, v{ACC+2*r+1}")
    a(f"s_mov_b64 exec, s[{T0}:{T1}]")
    a(f"buffer_store_dwordx4 v[80:83], v5, s[{S_WS}:{S_WS+3}], s{T4} offen offset:1024 sc1")
    a(f"buffer_store_dwordx4 v[84:87], v5, s[{S_WS}:{S_WS+3}], s{T4} offen offset:1536 sc1")
    a("s_mov_b64 exec, -1")
    a.label("L_ckf")
    a("v_mov_b32 v6, 1")
    a("s_waitcnt vmcnt(0)")
    spin(a, "L_pvc", FLG, 8, S_DBG, "0", slp=12)
    a("s_mov_b64 exec, 1")
    a(f"buffer_store_dword v6, v8, s[{S_WS}:{S_WS+3}], s{T5} offen sc1")
    a("s_mov_b64 exec, -1")
    stm(a, 'kvf')
    a.label("L_cke")
    a("s_barrier")
    a("s_barrier")
    chain("L_cq", 20, QA, 1024, 256)
    a("s_barrier")
    a("s_barrier")
    a("s_barrier")
    a("s_nop 7")
    a("s_branch L_qw")

    NM = 224
    a.label("L_fb")
    a("v_mov_b32 v5, 0xff800000")
    a(f"s_mov_b32 s{T0}, {WS_KV}")
    a.label("L_fb1")
    a(f"buffer_load_dwordx4 {vr(KF,4)}, v2, s[{S_WS}:{S_WS+3}], s{T0} offen sc1")
    a("s_waitcnt vmcnt(0)")
    a(f"v_mfma_f32_32x32x16_bf16 {vr(X,16)}, {vr(KF,4)}, {vr(QF,4)}, 0")
    a("s_nop 15")
    for r in range(8): a(f"v_max3_f32 v5, v{X+2*r}, v{X+2*r+1}, v5")
    a(f"s_add_u32 s{T0}, s{T0}, 2048")
    a(f"s_cmp_lg_u32 s{T0}, {WS_KV + 131072}")
    a("s_cbranch_scc1 L_fb1")
    a("v_mov_b32 v6, v5")
    a("s_nop 1")
    a("v_permlane32_swap_b32 v5, v6")
    a("s_nop 1")
    a("v_max_f32 v5, v5, v6")
    for i in range(16): a(f"v_sub_f32 v{NM+i}, 0, v5")
    for i in range(16): a(f"v_mov_b32 v{O+i}, 0")
    a("v_and_b32 v6, 15, v0")
    a("v_lshlrev_b32 v6, 4, v6")
    a("v_lshl_add_u32 v6, v7, 8, v6")
    a(f"s_mov_b32 s{T0}, {WS_KV}")
    a.label("L_fb2")
    a(f"buffer_load_dwordx4 {vr(KF,4)}, v2, s[{S_WS}:{S_WS+3}], s{T0} offen sc1")
    a(f"s_mov_b64 exec, s[{VM0}:{VM1}]")
    a(f"buffer_load_dwordx4 {vr(VF,4)}, v6, s[{S_WS}:{S_WS+3}], s{T0} offen offset:1024 sc1")
    a(f"buffer_load_dwordx4 {vr(VF+4,4)}, v6, s[{S_WS}:{S_WS+3}], s{T0} offen offset:1536 sc1")
    a("s_mov_b64 exec, -1")
    a("s_waitcnt vmcnt(0)")
    a(f"v_mfma_f32_32x32x16_bf16 {vr(X,16)}, {vr(KF,4)}, {vr(QF,4)}, {vr(NM,16)}")
    a("s_nop 15")
    for r in range(16): a(f"v_exp_f32 v{X+r}, v{X+r}")
    a("s_nop 1")
    a(f"v_smfmac_f32_32x32x32_bf16 {vr(O,16)}, {vr(VF,4)}, {vr(X,8)}, v{IDX}")
    a(f"v_smfmac_f32_32x32x32_bf16 {vr(O,16)}, {vr(VF+4,4)}, {vr(X+8,8)}, v{IDX}")
    a("s_nop 15")
    a(f"s_add_u32 s{T0}, s{T0}, 2048")
    a(f"s_cmp_lg_u32 s{T0}, {WS_KV + 131072}")
    a("s_cbranch_scc1 L_fb2")
    a("s_branch L_fin")
    a.label("L_code_end")

def main(out):
    a = Asm()
    gen(a)
    kernel_desc(a, NAME, 256)
    hdr = "; @launch grid=(256,1,1) block=(512,1,1) lds=163840\n"
    hdr += '.amdgcn_target "amdgcn-amd-amdhsa--gfx950"\n'
    open(out, "w").write(hdr + a.text())
    import subprocess
    subprocess.check_call(["clang", "-x", "assembler", "-target", "amdgcn-amd-amdhsa", "-mcpu=gfx950", "-c", out, "-o", "chk.o"])
    sy = subprocess.check_output(["llvm-objdump", "-t", "chk.o"]).decode()
    sym = {l.split()[-1]: int(l.split()[0], 16) for l in sy.splitlines() if " .text" in l}
    if CODEPF:
        assert sym["L_comp"] >= 1024 and sym["L_npf"] - 1024 + CODE_LAST + 4 <= sym["L_code_end"], sym
    print(out, "code bytes", sym["L_code_end"])

if __name__ == "__main__":
    if len(sys.argv) > 2 and sys.argv[2] == "stamp": asmlib.STAMP = True
    main(sys.argv[1])
```

```python
import sys, struct, os
import asmlib
from asmlib import *

def f32hex(x): return "0x%08x" % struct.unpack("<I", struct.pack("<f", x))[0]
LOG2E = 1.4426950408889634
NAME = "gated_mix__grouped_kv_mqa__glu_gated_glu__prompt_kernel"
WS_HO = 0
WS_KV = 0x900000
WS_G  = 0x920000
WS_FK = 0x922000
WS_FH = 0x924000
WS_FO = 0x92C000
WS_SZ = 0x96C000
E = lambda n, d: int(os.environ.get(n, d))
ROT = E("ROT", 1); CODEPF = E("CODEPF", 1); PRIO = E("PRIO", 0)
SPIN = 1 << 20
LOADER = E('LOADER', 1)
CHST = E('CHST', 0)
CODE_LAST = 12288
STN = os.environ.get("STAMPS", "c0,p1end,p2start,loopend").split(",")
PADAT = os.environ.get("PADAT", ""); PADT = E("PADT", 0)
def stm(a, name):
    if name == PADAT:
        a.label(f"L_pad{len(a.lines)}")
        lbl = a.lines[-1][:-1]
        a("s_memrealtime s[88:89]")
        a("s_waitcnt lgkmcnt(0)")
        a("s_sub_u32 s88, s88, s84")
        a(f"s_cmp_lt_u32 s88, {PADT}")
        a(f"s_cbranch_scc1 {lbl}")
    if asmlib.STAMP and name in STN: stamp(a, 2 + STN.index(name))

S_X, S_WS, S_A, S_B, S_C, S_DBG = 4, 8, 12, 16, 20, 24
RB, CB, ROTS, II, WV, TP, CP, TB = 28, 29, 30, 31, 32, 33, 34, 35
P_X, P_WQ, P_WK, P_WV, P_WO, P_G, P_U, P_D, P_GW, P_OUT, P_DBG, P_WS = 36, 38, 40, 42, 44, 48, 50, 52, 54, 56, 58, 60
CH, SST = 46, 47
T0, T1, T2, T3, T4, T5 = 62, 63, 64, 65, 66, 67
XSO, WLD, CNT, NB = 68, 69, 70, 71
VM0, VM1 = 72, 73
HSO, WSO = 74, 75
HS1 = 3
HD0 = 30
RET = 20

STG = 49152
PSC = 3*STG
RING = 65536
KVA, KVBB = 98304, 0

def spin(a, lbl, vdst, vaddr, srd_, soff, wide=False, slp=4):
    a(f"s_mov_b32 s{CNT}, {SPIN}")
    a.label(lbl)
    if wide: a(f"v_min_u32 v{vdst}, v{vdst}, v{vdst+1}")
    a(f"v_cmp_ne_u32 vcc, 0, v{vdst}")
    a("s_cmp_eq_u64 vcc, -1")
    a(f"s_cbranch_scc1 {lbl}_ok")
    a(f"s_sub_u32 s{CNT}, s{CNT}, 1")
    a(f"s_cbranch_scc1 {lbl}_ok")
    a(f"s_sleep {slp}")
    pollload(a, vdst, vaddr, srd_, soff, wide)
    a("s_waitcnt vmcnt(0)")
    a(f"s_branch {lbl}")
    a.label(f"{lbl}_ok")
def pollload(a, vdst, vaddr, srd_, soff, wide=False):
    if wide: a(f"buffer_load_dwordx2 {vr(vdst,2)}, v{vaddr}, s[{srd_}:{srd_+3}], {soff} offen sc1")
    else: a(f"buffer_load_dword v{vdst}, v{vaddr}, s[{srd_}:{srd_+3}], {soff} offen sc1")

def gen(a):
    kernel_head(a, NAME)
    a.label("L_start")
    a("s_cmp_ge_u32 s2, 256")
    a("s_cbranch_scc1 L_end")
    stamp_real(a, 0); stamp(a, 1)
    if PADAT: a("s_memrealtime s[84:85]")
    a("s_load_dwordx16 s[36:51], s[0:1], 0")
    a("s_load_dwordx8 s[52:59], s[0:1], 64")
    a("s_load_dwordx2 s[60:61], s[0:1], 96")
    a("v_lshrrev_b32 v1, 6, v0")
    a("v_and_b32 v0, 63, v0")
    a("s_and_b32 s3, s2, 7")
    a(f"v_readfirstlane_b32 s{WV}, v1")
    a(f"s_lshr_b32 s{II}, s2, 3")
    a(f"s_and_b32 s{RB}, s3, 1")
    a(f"s_lshl_b32 s{RB}, s{RB}, 3")
    a(f"s_and_b32 s{T0}, s{II}, 7")
    a(f"s_add_u32 s{RB}, s{RB}, s{T0}")
    a(f"s_lshr_b32 s{CB}, s3, 1")
    a(f"s_lshl_b32 s{CB}, s{CB}, 2")
    a(f"s_lshr_b32 s{T1}, s{II}, 3")
    a(f"s_add_u32 s{CB}, s{CB}, s{T1}")
    if ROT:
        a(f"s_lshl_b32 s{T1}, s{T1}, 1")
        a(f"s_add_u32 s{ROTS}, s{T0}, s{T1}")
    else:
        a(f"s_mov_b32 s{ROTS}, 0")
    a(f"s_lshr_b32 s{TP}, s{WV}, 2")
    a(f"s_and_b32 s{CP}, s{WV}, 3")
    L4, FLG = 18, 30
    a("v_lshlrev_b32 v2, 4, v0")
    a("v_lshrrev_b32 v4, 4, v0")
    a("v_lshrrev_b32 v7, 5, v0")
    a("v_and_b32 v14, 1, v4")
    a(f"v_lshlrev_b32 v{L4}, 2, v0")
    a("v_lshlrev_b32 v29, 7, v0")
    a(f"s_lshl_b32 s{WLD}, s{CP}, 10")
    a(f"s_cmp_eq_u32 s{TP}, {LOADER}")
    a("s_cbranch_scc0 L_comp")
    a("s_setprio 3")
    a("v_and_b32 v5, 7, v0")
    a("v_xor_b32 v5, v5, v4")
    a("v_lshlrev_b32 v5, 4, v5")
    a("v_lshrrev_b32 v8, 3, v0")
    a("v_lshl_add_u32 v3, v8, 10, v5")
    a("v_xor_b32 v15, 64, v3")
    a("v_add_u32 v15, 0x2000, v15")
    a(f"s_lshl_b32 s{XSO}, s{RB}, 17")
    a(f"s_lshl_b32 s{T2}, s{CP}, 15")
    a(f"s_add_u32 s{XSO}, s{XSO}, s{T2}")
    a(f"s_lshl_b32 s{NB}, s{CP}, 12")
    a(f"s_lshl_b32 s{T1}, s{CB}, 8")
    a("v_bfe_u32 v5, v0, 1, 3")
    a("v_lshlrev_b32 v6, 1, v4")
    a("v_xor_b32 v5, v5, v6")
    a("v_lshlrev_b32 v5, 5, v5")
    a("v_and_b32 v6, 1, v0")
    a("v_lshl_add_u32 v5, v6, 4, v5")
    a(f"s_lshl_b32 s{T0}, s{CP}, 2")
    a(f"v_add_u32 v6, s{T0}, v4")
    a("v_mul_u32_u24 v6, 3584, v6")
    a(f"v_add3_u32 v10, v5, v6, s{T1}")
    a("v_xor_b32 v11, 32, v10")
    a("v_lshrrev_b32 v5, 2, v0")
    a("v_and_b32 v6, 3, v0")
    a("v_lshlrev_b32 v6, 4, v6")
    a("v_lshl_add_u32 v12, v5, 10, v6")
    a(f"s_lshl_b32 s{T0}, s{CP}, 14")
    a(f"s_lshl_b32 s{T1}, s{CB}, 6")
    a(f"s_add_u32 s{T0}, s{T0}, s{T1}")
    a(f"v_add_u32 v12, s{T0}, v12")
    a(f"s_add_u32 s{WSO}, s{WLD}, {PSC}")
    a("v_mov_b32 v8, 0")
    a("s_waitcnt lgkmcnt(0)")
    a(f"s_mov_b32 s{CH}, s{ROTS}")
    a(f"s_mov_b32 s{SST}, 0")
    stm(a, 'karg')
    srd(a, S_X, P_X, 2097152)
    srd(a, S_C, P_WQ, 524288)
    ST2 = 24576
    def chunk_dma(kvwg):
        a(f"s_and_b32 s{T0}, s{CH}, 7")
        a(f"s_lshl_b32 s{T1}, s{T0}, 7")
        a(f"s_add_u32 m0, s{NB}, s{SST}")
        a(f"s_add_u32 s{T1}, s{T1}, s{XSO}")
        for n in range(4):
            a(f"buffer_load_dwordx4 v{3 if n % 2 == 0 else 15}, s[{S_X}:{S_X+3}], s{T1} offen lds")
            if n < 3:
                a("s_add_u32 m0, m0, 1024")
                if n == 1: a(f"s_add_u32 s{T1}, s{T1}, 16384")
                else: a("s_nop 0")
        if kvwg:
            a(f"s_add_u32 m0, s{WLD}, s{SST}")
            a("s_add_u32 m0, m0, 16384")
            a(f"s_lshl_b32 s{T1}, s{T0}, 16")
            a(f"buffer_load_dwordx4 v12, s[{S_C}:{S_C+3}], s{T1} offen lds")
            a("s_add_u32 m0, m0, 4096")
            a(f"s_lshl_b32 s{T1}, s{T0}, 11")
            a(f"buffer_load_dwordx4 v10, s[{S_A}:{S_A+3}], s{T1} offen lds")
            a(f"s_add_u32 s{CH}, s{CH}, 1")
            a(f"s_add_u32 s{SST}, s{SST}, {ST2}")
            return
        a(f"s_mov_b32 m0, s{WSO}")
        a(f"s_lshl_b32 s{T1}, s{T0}, 16")
        a(f"buffer_load_dwordx4 v12, s[{S_C}:{S_C+3}], s{T1} offen lds")
        a(f"s_add_u32 m0, s{WLD}, s{SST}")
        a("s_add_u32 m0, m0, 16384")
        a(f"s_mul_i32 s{T1}, s{T0}, {64*3584}")
        for n in range(4):
            a(f"buffer_load_dwordx4 v10, s[{S_A}:{S_A+3}], s{T1} offen lds")
            a("s_add_u32 m0, m0, 16384")
            a("s_nop 0")
            a(f"buffer_load_dwordx4 v11, s[{S_B}:{S_B+3}], s{T1} offen lds")
            if n < 3:
                a(f"s_sub_u32 m0, m0, {16384 - 4096}")
                a(f"s_add_u32 s{T1}, s{T1}, {16*3584}")
        a(f"s_add_u32 s{CH}, s{CH}, 1")
        a(f"s_add_u32 s{WSO}, s{WSO}, 4096")
        a(f"s_and_b32 s{WSO}, s{WSO}, 0x3fff")
        a(f"s_or_b32 s{WSO}, s{WSO}, {PSC}")
        a(f"s_add_u32 s{SST}, s{SST}, {STG}")
        a(f"s_cmp_eq_u32 s{SST}, {3*STG}")
        a(f"s_cselect_b32 s{SST}, 0, s{SST}")
    assert PSC & 0x3fff == 0
    srd(a, S_DBG, P_DBG, 256)
    a(f"s_cmp_ge_u32 s{CB}, 14")
    a("s_cbranch_scc1 L_lkv")
    srd(a, S_A, P_G, 1835008)
    srd(a, S_B, P_U, 1835008)
    chunk_dma(0)
    a(f"s_mov_b32 s{CNT}, 6")
    a("s_branch L_ldi")
    a.label("L_ld")
    pollload(a, FLG, 8, S_DBG, "0")
    a.label("L_ldi")
    chunk_dma(0)
    a(f"s_sub_u32 s{CNT}, s{CNT}, 1")
    a("s_waitcnt vmcnt(13)")
    a("s_barrier")
    a("s_cbranch_scc0 L_ld")
    QF, X, Y, O, KF, VF = 8, 32, 48, 64, 96, 104
    DA, BF, AF = 128, 192, 208
    IDX, AK, AV, AT0, AT1, WDO, TRO, GA, GD0, GD1 = 19, 20, 21, 22, 23, 24, 25, 26, 27, 28
    a.label("L_ld6")
    srd(a, S_WS, P_WS, WS_SZ)
    spin(a, "L_kvc", FLG, 8, S_DBG, "0", slp=12)
    a(f"s_mov_b32 s{HD0}, {WS_FK}")
    pollload(a, FLG, 29, S_WS, f"s{HD0}", True)
    a(f"s_getpc_b64 s[{T4}:{T5}]")
    a.label("L_c1")
    a(f"s_add_u32 s{T4}, s{T4}, L_c1r - L_c1")
    a(f"s_addc_u32 s{T5}, s{T5}, 0")
    a("s_branch L_setup")
    a.label("L_c1r")
    if ROT: a(f"s_lshl_b32 s{CH}, s{II}, 2")
    else: a(f"s_mov_b32 s{CH}, 0")
    a(f"s_lshl_b32 s{T0}, s{CP}, 2")
    a(f"s_add_u32 s{CH}, s{CH}, s{T0}")
    a(f"s_lshl_b32 s{T2}, s{CP}, 12")
    a("s_waitcnt vmcnt(0)")
    spin(a, "L_kvp", FLG, 29, S_WS, f"s{HD0}", True, slp=8)
    stm(a, 'kvp')
    def kvgroup(idx, lds):
        a(f"s_add_u32 s{T0}, s{CH}, {idx}")
        a(f"s_and_b32 s{T0}, s{T0}, 127")
        a(f"s_lshl_b32 s{T0}, s{T0}, 10")
        a(f"s_add_u32 m0, s{T2}, {lds}")
        a(f"s_add_u32 s{T0}, s{T0}, {WS_KV}")
        for n in range(4):
            a(f"buffer_load_dwordx4 v2, s[{S_WS}:{S_WS+3}], s{T0} offen offset:{n*1024} sc1 lds")
    kvgroup(0, KVA)
    a("s_barrier")
    kvgroup(64, KVBB); kvgroup(64+16, KVBB+16384); kvgroup(16, KVA+16384); kvgroup(64+32, KVBB+32768)
    a("s_barrier")
    kvgroup(32, KVA+32768); kvgroup(64+48, KVBB+49152); kvgroup(48, KVA+49152)
    a("s_waitcnt vmcnt(24)")
    a("s_barrier")
    a("s_setprio 0")
    a(f"ds_read_b128 {vr(QF,4)}, v16")
    a(f"ds_read_b128 {vr(QF+4,4)}, v16 offset:1024")
    a("s_branch L_p2")

    a.label("L_comp")
    if CODEPF:
        a(f"s_and_b32 s{T0}, s{II}, 7")
        a(f"s_or_b32 s{T0}, s{T0}, s{CP}")
        a("s_cbranch_scc1 L_npf")
        a(f"s_getpc_b64 s[{T4}:{T5}]")
        a("v_lshlrev_b32 v5, 7, v0")
        a(f"global_load_dword v250, v5, s[{T4}:{T5}] offset:-1024")
        a("v_add_u32 v5, 0x2000, v5")
        a(f"v_min_u32 v5, {CODE_LAST}, v5")
        a(f"global_load_dword v250, v5, s[{T4}:{T5}] offset:-1024")
        a.label("L_npf")
    a("v_and_b32 v5, 31, v0")
    a("v_bfe_u32 v6, v0, 1, 3")
    a("v_xor_b32 v6, v6, v7")
    a("v_lshlrev_b32 v6, 4, v6")
    a("v_lshl_add_u32 v20, v5, 7, v6")
    a(f"s_lshl_b32 s{T0}, s{CP}, 12")
    a(f"v_add_u32 v20, s{T0}, v20")
    a("v_xor_b32 v21, 32, v20")
    a("v_xor_b32 v22, 64, v20")
    a("v_xor_b32 v23, 0x60, v20")
    for r in range(4): a(f"v_xor_b32 v{240+r}, 0x1000, v{20+r}")
    a("v_bfe_u32 v6, v0, 2, 2")
    a("v_lshl_add_u32 v5, v7, 3, v6")
    a("v_lshl_add_u32 v8, v6, 1, v14")
    a(f"s_and_b32 s{T0}, s{CP}, 1")
    a(f"s_lshl_b32 s{T0}, s{T0}, 2")
    a(f"v_xor_b32 v8, s{T0}, v8")
    a("v_lshlrev_b32 v8, 5, v8")
    a("v_lshl_add_u32 v8, v5, 8, v8")
    a("v_lshl_add_u32 v8, v14, 14, v8")
    a("v_and_b32 v9, 3, v0")
    a("v_lshl_add_u32 v8, v9, 3, v8")
    a("v_add_u32 v24, 16384, v8")
    a("v_xor_b32 v25, 32, v24")
    a("v_xor_b32 v26, 64, v24")
    a("v_xor_b32 v27, 0x60, v24")
    a("v_lshlrev_b32 v8, 6, v5")
    a("v_lshl_add_u32 v8, v14, 5, v8")
    a("v_lshl_add_u32 v8, v9, 3, v8")
    a(f"v_add_u32 v244, {PSC}, v8")
    a("s_waitcnt lgkmcnt(0)")
    srd(a, S_X, P_X, 2097152)
    srd(a, S_C, P_GW, 1024)
    a(f"s_lshl_b32 s{TB}, s{RB}, 7")
    a(f"s_lshl_b32 s{T1}, s{CB}, 3")
    a(f"s_add_u32 s{TB}, s{TB}, s{T1}")
    a(f"s_lshl_b32 s{T1}, s{CP}, 1")
    a(f"s_add_u32 s{TB}, s{TB}, s{T1}")
    a(f"s_lshl_b32 s{T1}, s{TB}, 10")
    a("v_lshlrev_b32 v5, 5, v0")
    a("v_and_b32 v6, 0x3ff, v5")
    a(f"buffer_load_dwordx4 v[32:35], v5, s[{S_X}:{S_X+3}], s{T1} offen")
    a(f"buffer_load_dwordx4 v[36:39], v5, s[{S_X}:{S_X+3}], s{T1} offen offset:16")
    a(f"buffer_load_dwordx4 v[40:43], v6, s[{S_C}:{S_C+3}], 0 offen")
    a(f"buffer_load_dwordx4 v[44:47], v6, s[{S_C}:{S_C+3}], 0 offen offset:16")
    srd(a, S_WS, P_WS, WS_SZ)
    ACC, FR, QA = 96, 32, 224
    for i in range(4): a(f"v_mov_b32 v{80+i}, 0")
    a("s_nop 1")
    for i in range(9): a(f"v_mfma_f32_32x32x16_bf16 {vr(ACC+16*i,16)}, v[80:83], v[80:83], 0")
    a("v_mov_b32 v31, 0")
    a("s_waitcnt vmcnt(0)")
    for i in range(8): a(f"v_dot2c_f32_bf16 v31, v{32+i}, v{40+i}")
    a("s_nop 2")
    for sh in (1, 2, 4, 8):
        a(f"v_add_f32_dpp v31, v31, v31 row_shr:{sh} row_mask:0xf bank_mask:0xf bound_ctrl:0")
        a("s_nop 1")
    a("v_add_f32_dpp v31, v31, v31 row_bcast:15 row_mask:0xa bank_mask:0xf")
    a(f"s_lshl_b32 s{T1}, s{TB}, 2")
    a(f"v_mul_f32 v31, {f32hex(-LOG2E)}, v31")
    a("v_exp_f32 v31, v31")
    a(f"s_add_u32 s{T1}, s{T1}, {WS_G}")
    a("v_add_f32 v31, 1.0, v31")
    a("v_rcp_f32 v31, v31")
    a("v_lshlrev_b32 v16, 2, v7")
    a(f"s_mov_b32 s{T4}, 0x80000000")
    a(f"s_mov_b32 s{T5}, 0x80000000")
    a(f"s_mov_b64 exec, s[{T4}:{T5}]")
    a(f"buffer_store_dword v31, v16, s[{S_WS}:{S_WS+3}], s{T1} offen sc1")
    a("s_mov_b64 exec, -1")
    srd(a, S_DBG, P_DBG, 256)
    a(f"s_xor_b32 s{T0}, s{CP}, 1")
    a(f"s_or_b32 s{T0}, s{T0}, s2")
    a("s_cbranch_scc1 L_nclr")
    a("v_mov_b32 v16, 0")
    a("v_mov_b32 v17, 0")
    a(f"s_mov_b32 s{T0}, {WS_FK}")
    a(f"buffer_store_dwordx2 v[16:17], v29, s[{S_WS}:{S_WS+3}], s{T0} offen sc1")
    a("s_waitcnt vmcnt(0)")
    a("v_mov_b32 v17, 1")
    a("s_mov_b64 exec, 1")
    a(f"buffer_store_dword v17, v16, s[{S_DBG}:{S_DBG+3}], 0 offen sc1")
    a("s_mov_b64 exec, -1")
    a.label("L_nclr")
    def reads(ks, buf):
        b = FR + 28 * buf
        a(f"ds_read_b128 {vr(b,4)}, v{20+ks}")
        a(f"ds_read_b64_tr_b16 {vr(b+24,2)}, v244 offset:{ks*1024}")
        a(f"ds_read_b64_tr_b16 {vr(b+26,2)}, v244 offset:{ks*1024+256}")
        for j in range(4):
            a(f"ds_read_b64_tr_b16 {vr(b+8+4*j,2)}, v{24+j} offset:{ks*4096}")
            a(f"ds_read_b64_tr_b16 {vr(b+10+4*j,2)}, v{24+j} offset:{ks*4096+1024}")
            if j == 0: a(f"ds_read_b128 {vr(b+4,4)}, v{240+ks}")
    def rdlines(ks, buf):
        save = a.lines; a.lines = []; reads(ks, buf); lines = a.lines; a.lines = save
        return lines
    def mf(buf, k):
        b = FR + 28 * buf
        if k == 0:
            a(f"v_mfma_f32_32x32x16_bf16 {vr(QA,16)}, {vr(b+24,4)}, {vr(b,4)}, {vr(QA,16)}")
            return
        j, i = (k-1) // 2, (k-1) % 2
        d = ACC + (i*4+j)*16
        a(f"v_mfma_f32_32x32x16_bf16 {vr(d,16)}, {vr(b+8+4*j,4)}, {vr(b+4*i,4)}, {vr(d,16)}")
    NEED = {0: 3, 1: 5, 2: 6, 3: 8, 5: 10, 7: 12}
    def kstep(buf, rd, extra=None):
        lines = rdlines(rd, buf ^ 1)
        for k in range(9):
            if k in NEED: a(f"s_waitcnt lgkmcnt({12 - NEED[k] + min(12, 2*k)})")
            mf(buf, k)
            a.lines += lines[2*k:2*k+2]
            if extra: extra(k)
    a(f"s_mov_b32 s{SST}, 0")
    a(f"s_mov_b32 s{CNT}, 7")
    a(f"s_cmp_ge_u32 s{CB}, 14")
    a("s_cbranch_scc1 L_ckv")
    stm(a, 'c0')
    a("s_barrier")
    stm(a, 'b0')
    reads(0, 0)
    a("s_branch L_ci")
    a.raw(".p2align 6")
    a.label("L_cl")
    lines = rdlines(0, 0)
    for k in range(1, 9):
        a.lines += lines[2*(k-1):2*k]
        mf(1, k)
    a.label("L_ci")
    def extra1(k):
        if k == 6:
            a(f"s_cmp_eq_u32 s{SST}, {2*STG}")
            a(f"s_mov_b32 s{T3}, {STG}")
            a(f"s_cselect_b32 s{T3}, {(-2*STG) & 0xffffffff}, s{T3}")
            a(f"s_add_u32 s{SST}, s{SST}, s{T3}")
        if k == 7:
            for r in (20, 21, 22): a(f"v_add_u32 v{r}, s{T3}, v{r}")
        if k == 8:
            for r in (240, 241, 242): a(f"v_add_u32 v{r}, s{T3}, v{r}")
    def extra(k):
        if k == 3: a("v_add_u32 v244, 4096, v244")
        if k == 4: a("v_and_b32 v244, 0x3fff, v244")
        if k == 5: a(f"v_or_b32 v244, {PSC}, v244")
        if k == 6:
            for r in (23, 243, 24): a(f"v_add_u32 v{r}, s{T3}, v{r}")
        if k == 7:
            for r in (25, 26, 27): a(f"v_add_u32 v{r}, s{T3}, v{r}")
        if k == 8:
            a(f"s_sub_u32 s{CNT}, s{CNT}, 1")
            if CHST:
                a("s_memtime s[88:89]")
                a(f"s_mov_b32 s90, 6")
                a(f"s_cselect_b32 s91, 1, 0")
                a(f"s_sub_u32 m0, s90, s{CNT}")
                a("s_waitcnt lgkmcnt(0)")
                a(f"v_writelane_b32 v28, s88, m0")
                a("s_cmp_eq_u32 s91, 1")
            a("s_waitcnt lgkmcnt(0)")
            a("s_barrier")
    kstep(0, 1); kstep(1, 2, extra1); kstep(0, 3, extra)
    mf(1, 0)
    a("s_cbranch_scc0 L_cl")
    for k in range(1, 9): mf(1, k)
    stm(a, 'p1end')
    a.label("L_qw")
    a(f"s_mov_b32 s{T3}, {f32hex(0.25*LOG2E)}")
    a(f"s_xor_b32 s{T0}, s{WV}, 4")
    a(f"s_lshl_b32 s{T0}, s{T0}, 12")
    a(f"s_add_u32 s{T0}, s{T0}, {RING}")
    a(f"v_add_u32 v5, s{T0}, v2")
    for r in range(16): a(f"v_mul_f32 v{QA+r}, s{T3}, v{QA+r}")
    lo = 1 - LOADER
    for r in range(8): a(f"v_cvt_pk_bf16_f32 v{248 + (r + 4*lo) % 8}, v{QA+2*r}, v{QA+2*r+1}")
    a("ds_write_b128 v5, v[252:255]")
    a("ds_write_b128 v5, v[248:251] offset:1024")
    a(f"s_lshl_b32 s{T0}, s{RB}, 2")
    a(f"s_add_u32 s{T0}, s{T0}, s{CP}")
    a(f"s_xor_b32 s{T4}, s{T0}, 1")
    a(f"s_and_b32 s{T1}, s{CP}, 1")
    a(f"s_lshl_b32 s{T1}, s{T1}, 2")
    a(f"s_lshl_b32 s{T2}, s{CB}, 3")
    a(f"s_add_u32 s{T1}, s{T1}, s{T2}")
    a(f"s_mul_i32 s{T2}, s{T0}, 144")
    a(f"s_add_u32 s{T2}, s{T2}, s{T1}")
    a(f"s_lshl_b32 s{T2}, s{T2}, 10")
    a(f"s_mul_i32 s{T3}, s{T4}, 144")
    a(f"s_add_u32 s{T3}, s{T3}, s{T1}")
    a(f"s_lshl_b32 s{T3}, s{T3}, 10")
    a(f"s_mov_b32 s{XSO}, {f32hex(-LOG2E)}")
    a(f"s_cmp_ge_u32 s{CB}, 14")
    a("s_waitcnt lgkmcnt(0)")
    a("s_barrier")
    a("s_cbranch_scc1 L_qe")
    def h_tile(i, j):
        d = ACC + (i*4+j)*16
        for r in range(8): a(f"v_mul_f32 v{d+r}, s{XSO}, v{d+r}")
        for r in range(8): a(f"v_exp_f32 v{d+r}, v{d+r}")
        for r in range(8): a(f"v_add_f32 v{d+r}, 1.0, v{d+r}")
        for r in range(8): a(f"v_rcp_f32 v{d+r}, v{d+r}")
        for r in range(8): a(f"v_mul_f32 v{d+r}, v{d+r}, v{d+8+r}")
        for r in range(4): a(f"v_cvt_pk_bf16_f32 v{d+8+r}, v{d+2*r}, v{d+2*r+1}")
        a(f"buffer_store_dwordx4 {vr(d+8,4)}, v2, s[{S_WS}:{S_WS+3}], s{T2+i} offen offset:{j*1024} sc1")
    for j in range(4):
        h_tile(0, j); h_tile(1, j)
    a.label("L_qe")
    stm(a, 'epi')
    if CHST: a("v_mov_b32 v1, v28")
    a(f"s_getpc_b64 s[{T4}:{T5}]")
    a.label("L_c2")
    a(f"s_add_u32 s{T4}, s{T4}, L_c2r - L_c2")
    a(f"s_addc_u32 s{T5}, s{T5}, 0")
    a.label("L_setup")
    for r in range(8, 16): a(f"v_mov_b32 v{Y+r}, 0")
    a(f"s_cmp_eq_u32 s{TP}, 0")
    a(f"s_cselect_b32 s{T0}, {KVA}, {KVBB}")
    a(f"v_add_u32 v{AK}, s{T0}, v2")
    a("v_and_b32 v16, 15, v0")
    a("v_lshlrev_b32 v16, 4, v16")
    a("v_lshl_add_u32 v16, v7, 8, v16")
    a(f"s_add_u32 s{T0}, s{T0}, 1024")
    a(f"v_add_u32 v{AV}, s{T0}, v16")
    a(f"v_mov_b32 v{IDX}, 0xdddd")
    a("v_and_b32 v16, 27, v0")
    a("v_cmp_eq_u32 vcc, 16, v16")
    a("v_mov_b32 v17, 0x3f803f80")
    a(f"s_mov_b32 s{VM0}, 0xffff")
    a(f"v_cndmask_b32 v{VF}, 0, v17, vcc")
    for i in range(1, 16): a(f"v_mov_b32 v{VF+i}, v{VF}")
    a(f"s_mov_b32 s{VM1}, 0xffff")
    for d in (O, O+16, DA, DA+16, DA+32, DA+48, AF):
        a(f"v_mfma_f32_32x32x16_bf16 {vr(d,16)}, {vr(Y+8,4)}, {vr(Y+8,4)}, 0")
    srd(a, S_A, P_D, 1835008)
    srd(a, S_B, P_WO, 524288)
    srd(a, S_C, P_OUT, 2097152)
    a(f"s_and_b32 s{T0}, s{CB}, 1")
    a(f"s_lshl_b32 s{TB}, s{RB}, 1")
    a(f"s_add_u32 s{TB}, s{TB}, s{T0}")
    a(f"s_lshr_b32 s{NB}, s{CB}, 1")
    a("v_lshrrev_b32 v5, 3, v0")
    a("v_bfe_u32 v6, v0, 2, 1")
    a("v_xor_b32 v6, v6, v14")
    a("v_lshlrev_b32 v6, 6, v6")
    a(f"v_lshl_add_u32 v{WDO}, v5, 10, v6")
    a("v_and_b32 v17, 3, v0")
    a(f"v_lshl_add_u32 v{WDO}, v17, 4, v{WDO}")
    a(f"s_lshl_b32 s{T0}, s{NB}, 7")
    a(f"v_add_u32 v{WDO}, s{T0}, v{WDO}")
    a("v_bfe_u32 v5, v0, 2, 2")
    a("v_lshl_add_u32 v6, v7, 2, v5")
    a("v_lshlrev_b32 v6, 7, v6")
    a("v_bfe_u32 v5, v0, 3, 1")
    a("v_lshl_add_u32 v6, v5, 6, v6")
    a("v_lshl_add_u32 v6, v14, 5, v6")
    a(f"v_lshl_add_u32 v{TRO}, v17, 3, v6")
    a(f"s_lshl_b32 s{XSO}, s{WV}, 12")
    a(f"s_add_u32 s{XSO}, s{XSO}, {RING}")
    a(f"v_add_u32 v{AT0}, s{XSO}, v{TRO}")
    a(f"v_xor_b32 v{AT1}, 64, v{AT0}")
    a(f"s_lshl_b32 s{SST}, s{TB}, 1")
    a(f"s_add_u32 s{SST}, s{SST}, s{TP}")
    a(f"s_mul_i32 s{T0}, s{WV}, 14")
    a(f"s_mul_i32 s{HSO}, s{SST}, 144")
    a(f"s_add_u32 s{HSO}, s{HSO}, s{T0}")
    a(f"s_lshl_b32 s{HSO}, s{HSO}, 10")
    a(f"s_xor_b32 s{T1}, s{SST}, 1")
    a(f"s_mul_i32 s{HS1}, s{T1}, 144")
    a(f"s_add_u32 s{HS1}, s{HS1}, s{T0}")
    a(f"s_lshl_b32 s{HS1}, s{HS1}, 10")
    a(f"s_mul_i32 s{WSO}, s{WV}, 229376")
    for i in range(4): a(f"v_mov_b32 v{BF+12+i}, 0")
    a(f"v_add_u32 v16, s{XSO}, v2")
    a(f"s_setpc_b64 s[{T4}:{T5}]")

    a.label("L_c2r")
    for r in range(8): a(f"v_mov_b32 v{QF+r}, v{248+r}")
    a.label("L_p2")
    stm(a, 'b8')
    a(f"ds_read_b128 {vr(KF,4)}, v{AK}")
    a(f"s_mov_b64 exec, s[{VM0}:{VM1}]")
    a(f"ds_read_b128 {vr(VF,4)}, v{AV}")
    a(f"ds_read_b128 {vr(VF+4,4)}, v{AV} offset:512")
    a("s_mov_b64 exec, -1")
    if PRIO:
        a(f"s_cmp_eq_u32 s{TP}, {PRIO-1}")
        a("s_cbranch_scc0 L_prio")
        a("s_setprio 1")
        a.label("L_prio")
    a("s_waitcnt lgkmcnt(2)")
    a(f"v_mfma_f32_32x32x16_bf16 {vr(X,16)}, {vr(KF,4)}, {vr(QF,4)}, 0")
    a(f"s_mov_b32 s{CH}, 0")
    a("s_waitcnt lgkmcnt(0)")
    a("s_nop 9")
    stm(a, 'p2start')

    def wdma(slot, tag):
        for n in range(2):
            a(f"s_add_u32 m0, s{XSO}, {slot*2048 + n*1024}")
            a(f"s_add_u32 s{T0}, s{WSO}, {n*8192}") if n else a("s_nop 0")
            a.vmem(f"buffer_load_dwordx4 v{WDO}, s[{S_A}:{S_A+3}], s{T0 if n else WSO} offen lds", tag)
        a(f"s_add_u32 s{WSO}, s{WSO}, 16384")
    def bload(bufi, i, off, tag):
        a.vmem(f"buffer_load_dwordx4 {vr(BF+8*bufi+4*i,4)}, v2, s[{S_WS}:{S_WS+3}], s{HSO if i == 0 else HS1} offen offset:{off} sc1", tag)
    def trread(slot, k):
        j, r = k // 2, k % 2
        a(f"ds_read_b64_tr_b16 {vr(AF+8*slot+4*j+2*r,2)}, v{AT0+j} offset:{slot*2048 + r*1024}")
    def gm(s, i, j):
        d = DA + (i*2+j)*16
        a(f"v_mfma_f32_32x32x16_bf16 {vr(d,16)}, {vr(AF+8*s+4*j,4)}, {vr(BF+8*s+4*i,4)}, {vr(d,16)}")
    def wopiece(n):
        a(f"s_add_u32 m0, s{T2}, {n*1024}")
        a(f"s_add_u32 s{T0}, s{T3}, {n*8192}")
        a.vmem(f"buffer_load_dwordx4 v{WDO}, s[{S_B}:{S_B+3}], s{T0} offen lds", "wo")

    def body(mode):
        gemm = mode in ("gemm", "last")
        for u in range(8):
            t, hd = u // 2, u % 2
            cur, nxt = (X, Y) if hd == 0 else (Y, X)
            p, q = u // 4, u % 4
            def ex(lo, hi):
                for r in range(lo, hi): a(f"v_exp_f32 v{cur+r}, v{cur+r}")
            ex(0, 2)
            pv = (t - 1) % 2 if hd == 0 else t % 2
            a(f"v_smfmac_f32_32x32x32_bf16 {vr(O+16*(1-hd),16)}, {vr(VF+8*pv+4,4)}, {vr(nxt+8,8)}, v{IDX}")
            lastt = mode == "last" and t == 3
            if hd == 0:
                if not lastt:
                    a(f"s_mov_b64 exec, s[{VM0}:{VM1}]")
                    a(f"ds_read_b128 {vr(VF+8*((t+1)%2),4)}, v{AV} offset:{(t+1)*2048}")
                    a(f"ds_read_b128 {vr(VF+8*((t+1)%2)+4,4)}, v{AV} offset:{(t+1)*2048+512}")
                    a("s_mov_b64 exec, -1")
            else:
                a("s_waitcnt lgkmcnt(0)")
            ex(2, 6)
            kb = t % 2 if hd == 0 else (t+1) % 2
            if not (mode == "last" and u == 7):
                a(f"v_mfma_f32_32x32x16_bf16 {vr(nxt,16)}, {vr(KF+4*kb,4)}, {vr(QF+4*(1-hd),4)}, 0")
            if hd == 0:
                if gemm and q == 0: a.wait_vm(f"B{p}0")
                if not lastt: a(f"ds_read_b128 {vr(KF+4*((t+1)%2),4)}, v{AK} offset:{(t+1)*2048}")
                if gemm and q == 0: trread(p, 0); trread(p, 1)
            elif gemm and q == 1: wdma(p, f"W{p}")
            elif gemm and q == 3: a.wait_vm(f"B{p}1")
            ex(6, 10)
            a(f"v_smfmac_f32_32x32x32_bf16 {vr(O+16*hd,16)}, {vr(VF+8*(t%2),4)}, {vr(cur,8)}, v{IDX}")
            if gemm and q == 0: trread(p, 2); trread(p, 3)
            if not gemm: a("s_nop 0")
            if mode == "last" and u < 4: wopiece(2*u); wopiece(2*u+1)
            if u == 7 and gemm:
                a(f"s_add_u32 s{HSO}, s{HSO}, 2048")
                a(f"s_add_u32 s{HS1}, s{HS1}, 2048")
            ex(10, 14)
            if gemm:
                if q == 0:
                    gm(1-p, 1, 1); bload(1-p, 1, (p+1)*1024, f"B{1-p}1")
                elif q == 1: gm(p, 0, 0)
                elif q == 2:
                    gm(p, 0, 1); bload(p, 0, (p+2)*1024, f"B{p}0")
                else:
                    gm(p, 1, 0)
                    if u == 7 and mode == "gemm": a(f"s_sub_u32 s{CNT}, s{CNT}, 1")
            if u == 7 and mode != "last":
                a(f"v_add_u32 v{AK}, 8192, v{AK}")
                a(f"v_add_u32 v{AV}, 8192, v{AV}")
            ex(14, 16)

    a.label("L_a0")
    body("plain")
    a(f"s_lshl_b32 s{T5}, s{RB}, 11")
    a(f"s_add_u32 s{T5}, s{T5}, {WS_FH}")
    a(f"s_cmp_lg_u32 s{CH}, 0")
    a("s_cbranch_scc1 L_a1")
    a(f"s_mov_b32 s{CH}, 1")
    a("s_waitcnt vmcnt(0)")
    wdma(0, "x"); wdma(1, "x")
    a("s_barrier")
    a(f"s_cmp_lg_u32 s{WV}, 0")
    a("s_cbranch_scc1 L_a0")
    a(f"s_lshl_b32 s{T0}, s{CB}, 7")
    a(f"s_add_u32 s{T0}, s{T0}, s{T5}")
    a("v_mov_b32 v16, 0")
    a("v_mov_b32 v17, 1")
    a("s_mov_b64 exec, 1")
    a(f"buffer_store_dword v17, v16, s[{S_WS}:{S_WS+3}], s{T0} offen sc1")
    a("s_mov_b64 exec, -1")
    a("s_branch L_a0")
    a.label("L_a1")
    stm(a, 'hp0')
    a("v_and_b32 v17, 0x780, v29")
    pollload(a, FLG, 17, S_WS, f"s{T5}")
    a("s_waitcnt vmcnt(0)")
    spin(a, "L_hp", FLG, 17, S_WS, f"s{T5}")
    stm(a, 'hp1')
    bload(0, 0, 0, "x"); bload(0, 1, 0, "x")
    a(f"v_and_b32 v16, 0x7c, v{L4}")
    a(f"s_lshl_b32 s{T0}, s{RB}, 9")
    a(f"s_lshl_b32 s{T1}, s{CP}, 7")
    a(f"s_add_u32 s{T0}, s{T0}, s{T1}")
    a(f"s_add_u32 s{T0}, s{T0}, {WS_G}")
    a(f"buffer_load_dword v{GA}, v16, s[{S_WS}:{S_WS+3}], s{T0} offen sc1")
    a(f"s_lshl_b32 s{T0}, s{SST}, 7")
    a(f"s_add_u32 s{T0}, s{T0}, {WS_G}")
    a(f"buffer_load_dword v{GD0}, v16, s[{S_WS}:{S_WS+3}], s{T0} offen sc1")
    a(f"s_xor_b32 s{T0}, s{T0}, 128")
    a(f"buffer_load_dword v{GD1}, v16, s[{S_WS}:{S_WS+3}], s{T0} offen sc1")
    bload(1, 0, 1024, "x")
    a(f"s_mov_b32 s{CNT}, 4")
    steady = ["W0", "W0", "B00", "B01", "W1", "W1", "B10"]
    a.vm = list(steady)
    a.label("L_g")
    body("gemm")
    assert a.vm[-7:] == steady, a.vm
    a("s_cbranch_scc0 L_g")
    a(f"s_mul_i32 s{T2}, s{TP}, {KVA}")
    a(f"s_lshl_b32 s{T3}, s{CP}, 13")
    a(f"s_add_u32 s{T2}, s{T2}, s{T3}")
    a(f"s_lshl_b32 s{T3}, s{WV}, 16")
    a("s_barrier")
    a.vm = list(steady)
    body("last")
    a(f"s_mul_i32 s{WSO}, s{TP}, {KVA}")
    a(f"s_xor_b32 s{T0}, s{WSO}, {KVA}")
    a(f"s_mul_i32 s{T1}, s{CP}, 6144")
    a(f"s_add_u32 s{T1}, s{T1}, 32768")
    a(f"v_smfmac_f32_32x32x32_bf16 {vr(O+16,16)}, {vr(VF+8+4,4)}, {vr(Y+8,8)}, v{IDX}")
    gm(1, 1, 1)
    bload(1, 1, 1024, "B11")
    stm(a, 'loopend')
    a(f"s_add_u32 s{T4}, s{T0}, s{T1}")
    a(f"s_add_u32 s{T5}, s{WSO}, s{T1}")
    a(f"v_add_u32 v{AK}, s{T4}, v2")
    a(f"v_add_u32 v17, s{T4}, v{L4}")
    a(f"v_add_u32 v16, s{T5}, v2")
    a(f"s_lshl_b32 s{T1}, s{CP}, 11")
    a(f"s_add_u32 s{T1}, s{T1}, 57344")
    a(f"s_add_u32 s{T0}, s{T0}, s{T1}")
    a(f"s_add_u32 s{WSO}, s{WSO}, s{T1}")
    a(f"v_add_u32 v{AV}, s{T0}, v2")
    a(f"ds_write_b128 v{AK}, {vr(O+16,4)}")
    a(f"ds_write_b128 v{AK}, {vr(O+20,4)} offset:1024")
    a(f"ds_write_b32 v17, v{O+24} offset:2048")
    a(f"v_add_u32 v17, s{T5}, v{L4}")
    a(f"s_lshl_b32 s{T2}, s{RB}, 2")
    a(f"s_add_u32 s{T2}, s{T2}, s{CP}")
    a(f"s_mul_i32 s{T3}, s{T2}, 144")
    a(f"s_lshl_b32 s{T1}, s{CB}, 1")
    a(f"s_add_u32 s{T1}, s{T1}, s{TP}")
    a(f"s_add_u32 s{T3}, s{T3}, s{T1}")
    a(f"s_add_u32 s{T3}, s{T3}, 112")
    a(f"s_lshl_b32 s{T3}, s{T3}, 10")
    a(f"s_lshl_b32 s{T2}, s{T2}, 5")
    a(f"s_add_u32 s{T2}, s{T2}, s{T1}")
    a(f"s_lshl_b32 s{T2}, s{T2}, 7")
    a(f"s_add_u32 s{T2}, s{T2}, {WS_FO}")
    a(f"s_mov_b32 s{CH}, 0x1f800000")
    a(f"s_mov_b32 s{CNT}, 0x5f800000")
    a(f"s_mov_b32 s{T0}, 0x7f000000")
    a.wait_vm("wo", " lgkmcnt(0)")
    a("s_barrier")
    stm(a, 'b1')
    a(f"ds_read_b32 v{X+8}, v17 offset:2048")
    a(f"ds_read_b128 {vr(X,4)}, v16")
    a(f"ds_read_b128 {vr(X+4,4)}, v16 offset:1024")
    a("s_waitcnt lgkmcnt(0)")
    for r in (8, 0, 1, 2, 3, 4, 5, 6, 7): a(f"v_add_f32 v{O+r}, v{O+r}, v{X+r}")
    a(f"v_max3_f32 v5, |v{O}|, |v{O+1}|, |v{O+2}|")
    a(f"v_max3_f32 v5, |v{O+3}|, |v{O+4}|, v5")
    a(f"v_max3_f32 v5, |v{O+5}|, |v{O+6}|, v5")
    a(f"v_max_f32 v5, |v{O+7}|, v5")
    a(f"v_cmp_nlt_f32 s[{T4}:{T5}], s{CH}, v{O+8}")
    a(f"v_cmp_ngt_f32 vcc, s{CNT}, v{O+8}")
    a(f"s_or_b64 s[{T4}:{T5}], s[{T4}:{T5}], vcc")
    a(f"v_cmp_ngt_f32 vcc, s{T0}, v5")
    a(f"s_or_b64 s[{T4}:{T5}], s[{T4}:{T5}], vcc")
    a("s_cbranch_scc1 L_fb")
    a.label("L_fin")
    a(f"v_rcp_f32 v5, v{O+8}")
    a("s_setprio 0")
    a(f"v_mul_f32 v5, v5, v{GA}")
    for r in range(8): a(f"v_mul_f32 v{O+r}, v{O+r}, v5")
    for r in range(4): a(f"v_cvt_pk_bf16_f32 v{X+r}, v{O+2*r}, v{O+2*r+1}")
    a(f"buffer_store_dwordx4 {vr(X,4)}, v2, s[{S_WS}:{S_WS+3}], s{T3} offen sc1")
    stm(a, 'ost')
    a("s_waitcnt vmcnt(1)")
    for k in range(4): trread(0, k)
    for k in range(4): trread(1, k)
    a(f"s_lshr_b32 s{T0}, s{CP}, 1")
    a(f"s_mul_i32 s{T0}, s{T0}, {KVA}")
    a(f"s_and_b32 s{T1}, s{CP}, 1")
    a(f"s_lshl_b32 s{T1}, s{T1}, 14")
    a(f"s_add_u32 s{HSO}, s{T0}, s{T1}")
    a(f"v_add_u32 v{AT0}, s{HSO}, v{TRO}")
    a(f"v_xor_b32 v{AT1}, 64, v{AT0}")
    a(f"v_sub_f32 v{GD1}, 1.0, v{GD1}")
    a(f"v_sub_f32 v{GD0}, 1.0, v{GD0}")
    a(f"v_add_u32 v17, s{WSO}, v2")
    a("v_mov_b32 v6, 0")
    a("v_mov_b32 v5, 1")
    WF = 64
    a("s_waitcnt lgkmcnt(0)")
    k = 0
    for i in (1, 0):
        for s_ in range(2):
            for j in range(2):
                gm(s_, i, j)
                for jj in range(2):
                    for r in range(2):
                        a(f"ds_read_b64_tr_b16 {vr(WF+8*k+4*jj+2*r,2)}, v{AT0+jj} offset:{k*2048 + r*1024}")
                k += 1
    a("s_waitcnt vmcnt(0)")
    a("s_mov_b64 exec, 1")
    a(f"buffer_store_dword v5, v6, s[{S_WS}:{S_WS+3}], s{T2} offen sc1")
    a("s_mov_b64 exec, -1")
    stm(a, 'ofl')
    for g in range(8):
        for i in range(4): a(f"v_mul_f32 v{DA+32+4*g+i}, v{DA+32+4*g+i}, v{GD1}")
        a(f"ds_write_b128 v{16 if g < 6 else 17}, {vr(DA+32+4*g,4)} offset:{(g%6)*1024}")
    for i in range(32): a(f"v_mul_f32 v{DA+i}, v{DA+i}, v{GD0}")
    a("v_and_b32 v17, 0x380, v29")
    a(f"s_lshl_b32 s{T5}, s{SST}, 12")
    a(f"s_lshl_b32 s{T0}, s{CP}, 10")
    a(f"s_add_u32 s{T5}, s{T5}, s{T0}")
    a(f"s_add_u32 s{T5}, s{T5}, {WS_FO}")
    a("s_waitcnt lgkmcnt(0)")
    a("s_barrier")
    stm(a, 'b2')
    pollload(a, FLG, 17, S_WS, f"s{T5}")
    for g in range(8): a(f"ds_read_b128 {vr(X+4*g,4)}, v{AK if g < 6 else AV} offset:{(g%6)*1024}")
    a(f"s_mul_i32 s{T0}, s{SST}, 144")
    a(f"s_lshl_b32 s{T1}, s{CP}, 3")
    a(f"s_add_u32 s{T0}, s{T0}, s{T1}")
    a(f"s_add_u32 s{T0}, s{T0}, 112")
    a(f"s_lshl_b32 s{T0}, s{T0}, 10")
    a(f"s_add_u32 s{T1}, s{T0}, 4096")
    a("v_and_b32 v5, 31, v0")
    a("v_and_b32 v6, 15, v0")
    a("v_xor_b32 v6, v6, v7")
    a("v_lshlrev_b32 v6, 4, v6")
    a("v_lshl_add_u32 v6, v5, 8, v6")
    a(f"s_lshl_b32 s{T3}, s{TP}, 13")
    a(f"s_add_u32 s{T2}, s{HSO}, s{T3}")
    a(f"v_add_u32 v8, s{T2}, v6")
    for g in range(1, 8): a(f"v_xor_b32 v{8+g}, {32*g}, v8")
    a("s_waitcnt lgkmcnt(0)")
    for r in range(32): a(f"v_add_f32 v{DA+r}, v{DA+r}, v{X+r}")
    a("s_waitcnt vmcnt(0)")
    stm(a, 'op0')
    spin(a, "L_op", FLG, 17, S_WS, f"s{T5}", slp=2)
    stm(a, 'op1')
    for s_ in range(8):
        a(f"buffer_load_dwordx4 {vr(192+4*s_,4)}, v2, s[{S_WS}:{S_WS+3}], s{T0 + s_//4} offen offset:{(s_%4)*1024} sc1")
    a("v_lshrrev_b32 v5, 3, v0")
    a(f"s_lshl_b32 s{T2}, s{WV}, 3")
    a(f"v_add_u32 v5, s{T2}, v5")
    a("v_and_b32 v6, 7, v0")
    a("v_lshlrev_b32 v16, 4, v6")
    a("v_lshlrev_b32 v6, 1, v6")
    a("v_and_b32 v17, 15, v5")
    a("v_xor_b32 v6, v6, v17")
    a("v_lshlrev_b32 v6, 4, v6")
    a("v_lshl_add_u32 v6, v5, 8, v6")
    a("v_xor_b32 v17, 16, v6")
    a(f"v_add_u32 v20, {KVA}, v6")
    a(f"v_add_u32 v21, {KVA}, v17")
    a("v_lshl_add_u32 v16, v5, 10, v16")
    a(f"s_lshl_b32 s{T2}, s{TB}, 16")
    a(f"s_lshl_b32 s{T3}, s{NB}, 7")
    a(f"s_add_u32 s{T2}, s{T2}, s{T3}")
    for s_ in range(8):
        a(f"s_waitcnt vmcnt({7-s_})")
        for j in range(2):
            a(f"v_mfma_f32_32x32x16_bf16 {vr(DA+16*j,16)}, {vr(WF+8*s_+4*j,4)}, {vr(192+4*s_,4)}, {vr(DA+16*j,16)}")
    stm(a, 'omf')
    a("s_nop 10")
    for g in range(8): a(f"ds_write_b128 v{8+g}, {vr(DA+4*g,4)}")
    a("s_waitcnt lgkmcnt(0)")
    a("s_barrier")
    for k in range(4):
        a(f"ds_read_b128 {vr(X+8*k,4)}, v{6 if k < 2 else 20} offset:{(k%2)*16384}")
        a(f"ds_read_b128 {vr(X+8*k+4,4)}, v{17 if k < 2 else 21} offset:{(k%2)*16384}")
    for k in range(1, 4):
        a(f"s_waitcnt lgkmcnt({6-2*k})")
        for r in range(8): a(f"v_add_f32 v{X+r}, v{X+r}, v{X+8*k+r}")
    for r in range(4): a(f"v_cvt_pk_bf16_f32 v{O+r}, v{X+2*r}, v{X+2*r+1}")
    a(f"buffer_store_dwordx4 {vr(O,4)}, v16, s[{S_C}:{S_C+3}], s{T2} offen")
    stm(a, 'end')
    if asmlib.STAMP: a("s_waitcnt vmcnt(0)")
    stamp(a, 6); stamp_real(a, 7)
    stamp_dump(a, 0, P_WS, WV, 4)
    if CHST:
        a("s_lshl_b32 s80, s2, 3")
        a(f"s_add_u32 s80, s80, s{WV}")
        a("s_lshl_b32 s80, s80, 7")
        a(f"s_add_u32 s80, s80, {asmlib.WS_STAMP + 0x100000}")
        a("v_cmp_gt_u32 vcc, 8, v0")
        a("v_subrev_u32 v1, s86, v1")
        a("s_mov_b64 exec, vcc")
        a(f"buffer_store_dword v1, v{L4}, s[76:79], s80 offen")
    a.label("L_end")
    a("s_endpgm")

    WB = 131072
    a.label("L_lkv")
    srd(a, S_A, P_WK, 16384)
    srd(a, S_B, P_WV, 16384)
    a(f"s_and_b32 s{T2}, s{CB}, 1")
    a(f"s_mov_b32 s{CNT}, 0")
    a.label("L_lk0")
    a(f"s_lshl_b32 s{T1}, s{RB}, 17")
    a(f"s_lshl_b32 s{T0}, s{T2}, 16")
    a(f"s_add_u32 s{T1}, s{T1}, s{T0}")
    a(f"s_lshl_b32 s{T0}, s{CP}, 8")
    a(f"s_add_u32 s{T1}, s{T1}, s{T0}")
    a(f"s_lshl_b32 s{T0}, s{CP}, 15")
    a(f"s_lshl_b32 s{T3}, s{T2}, 13")
    a(f"s_add_u32 s{T0}, s{T0}, s{T3}")
    for c in range(2):
        for n in range(8):
            a(f"s_add_u32 m0, s{T0}, {c*16384 + n*1024}")
            a(f"s_add_u32 s{T3}, s{T1}, {c*128 + (n//2)*16384}")
            a(f"buffer_load_dwordx4 v{3 if n % 2 == 0 else 15}, s[{S_X}:{S_X+3}], s{T3} offen lds")
    a(f"s_cmp_lg_u32 s{CNT}, 0")
    a("s_cbranch_scc1 L_lk1")
    a(f"s_lshl_b32 s{T0}, s{CP}, 13")
    for c in range(2):
        for m, sd in enumerate((S_A, S_B)):
            a(f"s_add_u32 m0, s{T0}, {WB + c*4096 + m*2048}")
            a(f"s_add_u32 s{T3}, s{NB}, {c*2048}")
            a(f"buffer_load_dwordx4 v2, s[{sd}:{sd+3}], s{T3} offen lds")
            a(f"buffer_load_dwordx4 v2, s[{sd}:{sd+3}], s{T3} offen offset:1024 lds")
    a("s_waitcnt vmcnt(0)")
    a("s_barrier")
    a(f"s_xor_b32 s{T2}, s{T2}, 1")
    a(f"s_mov_b32 s{CNT}, 1")
    a("s_branch L_lk0")
    a.label("L_lk1")
    a("s_barrier")
    pollload(a, FLG, 8, S_DBG, "0")
    for c in range(8):
        a(f"s_add_u32 m0, s{WLD}, {WB + c*4096}")
        a(f"s_mov_b32 s{T3}, {c*65536}")
        a(f"buffer_load_dwordx4 v12, s[{S_C}:{S_C+3}], s{T3} offen lds")
    a("s_waitcnt vmcnt(0)")
    a("s_barrier")
    a("s_barrier")
    a("s_branch L_ld6")
    a.label("L_ckv")
    a(f"s_and_b32 s{T0}, s{CB}, 1")
    a(f"s_lshl_b32 s{T0}, s{T0}, 1")
    a(f"s_and_b32 s{T1}, s{CP}, 1")
    a(f"s_add_u32 s{T2}, s{T0}, s{T1}")
    a(f"s_sub_u32 s{T0}, s{T2}, s{CP}")
    a(f"s_lshl_b32 s{T0}, s{T0}, 12")
    for r in range(4): a(f"v_add_u32 v{240+r}, s{T0}, v{20+r}")
    a(f"v_add_u32 v24, {(WB - PSC) & 0xffffffff}, v244")
    a("v_bfe_u32 v6, v0, 2, 2")
    a("v_lshl_add_u32 v5, v7, 3, v6")
    a("v_lshlrev_b32 v5, 5, v5")
    a("v_lshl_add_u32 v5, v14, 11, v5")
    a("v_and_b32 v6, 3, v0")
    a("v_lshl_add_u32 v5, v6, 3, v5")
    a(f"v_add_u32 v244, {WB}, v5")
    a(f"s_lshl_b32 s{T0}, s{RB}, 2")
    a(f"s_add_u32 s{T2}, s{T2}, s{T0}")
    a("v_mov_b32 v8, 0")
    a(f"s_lshl_b32 s{T1}, s{T2}, 13")
    a(f"s_add_u32 s{T1}, s{T1}, {WS_FH}")
    a(f"s_cmp_ge_u32 s{CP}, 2")
    a(f"s_cselect_b32 s{T1}, {WS_SZ}, s{T1}")
    a(f"buffer_store_dword v8, v29, s[{S_WS}:{S_WS+3}], s{T1} offen sc1")
    def chain(lbl, ax, acc, kso, rdo, swap=False):
        def rd(k):
            c, ks = k // 4, k % 4
            b = 128 + k*8
            a(f"ds_read_b128 {vr(b,4)}, v{ax+ks} offset:{c*16384}")
            a(f"ds_read_b64_tr_b16 {vr(b+4,2)}, v{ax+4} offset:{c*4096 + ks*kso}")
            a(f"ds_read_b64_tr_b16 {vr(b+6,2)}, v{ax+4} offset:{c*4096 + ks*kso + rdo}")
        a(f"s_mov_b32 s{CNT}, 3")
        a.label(lbl)
        for k in range(4): rd(k)
        a(f"s_sub_u32 s{CNT}, s{CNT}, 1")
        for k in range(8):
            b = 128 + k*8
            a(f"s_waitcnt lgkmcnt({9 if k < 5 else 21-3*k})")
            a(f"v_mfma_f32_32x32x16_bf16 {vr(acc,16)}, {vr(b if swap else b+4,4)}, {vr(b+4 if swap else b,4)}, {vr(acc,16)}")
            if k < 4: rd(k+4)
            if k == 4:
                for r in range(4): a(f"v_add_u32 v{ax+r}, 32768, v{ax+r}")
                a(f"v_add_u32 v{ax+4}, 8192, v{ax+4}")
        a(f"s_cbranch_scc0 {lbl}")
    a(f"s_lshl_b32 s{T4}, s{T2}, 11")
    a(f"s_add_u32 s{T4}, s{T4}, {WS_KV}")
    a(f"s_lshl_b32 s{T5}, s{T2}, 7")
    a(f"s_add_u32 s{T5}, s{T5}, {WS_FK}")
    a("s_barrier")
    pollload(a, FLG, 8, S_DBG, "0")
    a(f"s_cmp_ge_u32 s{CP}, 2")
    a("s_cbranch_scc1 L_ckb")
    chain("L_ck", 240, ACC, 512, 128)
    a("v_and_b32 v5, 0x33, v0")
    a("v_bfe_u32 v6, v0, 2, 1")
    a("v_lshl_or_b32 v5, v6, 3, v5")
    a("v_bfe_u32 v6, v0, 3, 1")
    a("v_lshl_or_b32 v5, v6, 2, v5")
    a("v_lshlrev_b32 v5, 4, v5")
    a("s_nop 6")
    for r in range(4): a(f"v_cvt_pk_bf16_f32 v{80+r}, v{ACC+2*r}, v{ACC+2*r+1}")
    a(f"buffer_store_dwordx4 v[80:83], v5, s[{S_WS}:{S_WS+3}], s{T4} offen sc1")
    a("s_branch L_ckf")
    a.label("L_ckb")
    chain("L_cv", 240, ACC, 512, 128, True)
    a("v_and_b32 v5, 15, v0")
    a("v_lshlrev_b32 v5, 4, v5")
    a("v_lshl_add_u32 v5, v7, 8, v5")
    a(f"s_add_u32 s{T5}, s{T5}, 4")
    a(f"s_mov_b32 s{T0}, 0xffff0000")
    a(f"s_mov_b32 s{T1}, 0xffff0000")
    a("s_nop 6")
    for r in range(8): a(f"v_cvt_pk_bf16_f32 v{80+r}, v{ACC+2*r}, v{ACC+2*r+1}")
    a(f"s_mov_b64 exec, s[{T0}:{T1}]")
    a(f"buffer_store_dwordx4 v[80:83], v5, s[{S_WS}:{S_WS+3}], s{T4} offen offset:1024 sc1")
    a(f"buffer_store_dwordx4 v[84:87], v5, s[{S_WS}:{S_WS+3}], s{T4} offen offset:1536 sc1")
    a("s_mov_b64 exec, -1")
    a.label("L_ckf")
    a("v_mov_b32 v6, 1")
    a("s_waitcnt vmcnt(0)")
    spin(a, "L_pvc", FLG, 8, S_DBG, "0", slp=12)
    a("s_mov_b64 exec, 1")
    a(f"buffer_store_dword v6, v8, s[{S_WS}:{S_WS+3}], s{T5} offen sc1")
    a("s_mov_b64 exec, -1")
    stm(a, 'kvf')
    a.label("L_cke")
    a("s_barrier")
    a("s_barrier")
    chain("L_cq", 20, QA, 1024, 256)
    a("s_barrier")
    a("s_barrier")
    a("s_barrier")
    a("s_nop 7")
    a("s_branch L_qw")

    NM = 224
    a.label("L_fb")
    a("v_mov_b32 v5, 0xff800000")
    a(f"s_mov_b32 s{T0}, {WS_KV}")
    a.label("L_fb1")
    a(f"buffer_load_dwordx4 {vr(KF,4)}, v2, s[{S_WS}:{S_WS+3}], s{T0} offen sc1")
    a("s_waitcnt vmcnt(0)")
    a(f"v_mfma_f32_32x32x16_bf16 {vr(X,16)}, {vr(KF,4)}, {vr(QF,4)}, 0")
    a("s_nop 15")
    for r in range(8): a(f"v_max3_f32 v5, v{X+2*r}, v{X+2*r+1}, v5")
    a(f"s_add_u32 s{T0}, s{T0}, 2048")
    a(f"s_cmp_lg_u32 s{T0}, {WS_KV + 131072}")
    a("s_cbranch_scc1 L_fb1")
    a("v_mov_b32 v6, v5")
    a("s_nop 1")
    a("v_permlane32_swap_b32 v5, v6")
    a("s_nop 1")
    a("v_max_f32 v5, v5, v6")
    for i in range(16): a(f"v_sub_f32 v{NM+i}, 0, v5")
    for i in range(16): a(f"v_mov_b32 v{O+i}, 0")
    a("v_and_b32 v6, 15, v0")
    a("v_lshlrev_b32 v6, 4, v6")
    a("v_lshl_add_u32 v6, v7, 8, v6")
    a(f"s_mov_b32 s{T0}, {WS_KV}")
    a.label("L_fb2")
    a(f"buffer_load_dwordx4 {vr(KF,4)}, v2, s[{S_WS}:{S_WS+3}], s{T0} offen sc1")
    a(f"s_mov_b64 exec, s[{VM0}:{VM1}]")
    a(f"buffer_load_dwordx4 {vr(VF,4)}, v6, s[{S_WS}:{S_WS+3}], s{T0} offen offset:1024 sc1")
    a(f"buffer_load_dwordx4 {vr(VF+4,4)}, v6, s[{S_WS}:{S_WS+3}], s{T0} offen offset:1536 sc1")
    a("s_mov_b64 exec, -1")
    a("s_waitcnt vmcnt(0)")
    a(f"v_mfma_f32_32x32x16_bf16 {vr(X,16)}, {vr(KF,4)}, {vr(QF,4)}, {vr(NM,16)}")
    a("s_nop 15")
    for r in range(16): a(f"v_exp_f32 v{X+r}, v{X+r}")
    a("s_nop 1")
    a(f"v_smfmac_f32_32x32x32_bf16 {vr(O,16)}, {vr(VF,4)}, {vr(X,8)}, v{IDX}")
    a(f"v_smfmac_f32_32x32x32_bf16 {vr(O,16)}, {vr(VF+4,4)}, {vr(X+8,8)}, v{IDX}")
    a("s_nop 15")
    a(f"s_add_u32 s{T0}, s{T0}, 2048")
    a(f"s_cmp_lg_u32 s{T0}, {WS_KV + 131072}")
    a("s_cbranch_scc1 L_fb2")
    a("s_branch L_fin")
    a.label("L_code_end")

def main(out):
    a = Asm()
    gen(a)
    kernel_desc(a, NAME, 256)
    hdr = "; @launch grid=(256,1,1) block=(512,1,1) lds=163840\n"
    hdr += '.amdgcn_target "amdgcn-amd-amdhsa--gfx950"\n'
    open(out, "w").write(hdr + a.text())
    import subprocess
    subprocess.check_call(["clang", "-x", "assembler", "-target", "amdgcn-amd-amdhsa", "-mcpu=gfx950", "-c", out, "-o", "chk.o"])
    sy = subprocess.check_output(["llvm-objdump", "-t", "chk.o"]).decode()
    sym = {l.split()[-1]: int(l.split()[0], 16) for l in sy.splitlines() if " .text" in l}
    if CODEPF:
        assert sym["L_comp"] >= 1024 and sym["L_npf"] - 1024 + CODE_LAST + 4 <= sym["L_code_end"], sym
    print(out, "code bytes", sym["L_code_end"])

if __name__ == "__main__":
    if len(sys.argv) > 2 and sys.argv[2] == "stamp": asmlib.STAMP = True
    main(sys.argv[1])
```
